```python
import torch

def _softmax(x, axis=-1):
    return torch.softmax(x, dim=axis)

def _gelu(x):
    return torch.nn.functional.gelu(x, approximate='tanh')

def _silu(x):
    return torch.nn.functional.silu(x)

def _sigmoid(x):
    return torch.sigmoid(x)

def _layernorm(x, axis=-1, eps=1e-05):
    m = x.mean(dim=axis, keepdim=True)
    v = x.var(dim=axis, keepdim=True, unbiased=False)
    return (x - m) / torch.sqrt(v + eps)

def _scatter_add(tgt, idx, src, axis=0):
    return tgt.clone().index_add_(axis, idx, src)

def _segment_sum(src, seg, n):
    out = torch.zeros((n,) + src.shape[1:], dtype=src.dtype)
    return out.index_add_(0, seg, src)

def _pad(x, pw):
    flat = tuple((v for pair in reversed(pw) for v in pair))
    return torch.nn.functional.pad(x, flat)
kernel_name = 'interleave_layers__grouped_kv_mqa__memory_aug_recurrent_mem_tr__prompt'

def setup_inputs():

    _w = lambda a: (lambda t: t.to(torch.bfloat16) if t.is_floating_point() else t)(torch.as_tensor(a))

    def _A_setup():
        B, S, D, H = (1, 2048, 512, 32)
        Dh = D // H
        return {'x': _w((lambda *s: torch.randn(*s, dtype=torch.bfloat16) * 0.05)(B, S, D)), 'wq': _w((lambda *s: torch.randn(*s, dtype=torch.bfloat16) * 0.05)(D, H * Dh)), 'wk': _w((lambda *s: torch.randn(*s, dtype=torch.bfloat16) * 0.05)(D, Dh)), 'wv': _w((lambda *s: torch.randn(*s, dtype=torch.bfloat16) * 0.05)(D, Dh)), 'wo': _w((lambda *s: torch.randn(*s, dtype=torch.bfloat16) * 0.05)(H * Dh, D))}
    _A_in = _A_setup()

    def _B_setup():
        B, S, Dm = (1, 2048, 512)
        H, Dh = (32, 128)
        M, seg = (8, 32)
        seg = min(seg, S)
        S = S // seg * seg
        return {'x': _w((lambda *s: torch.randn(*s, dtype=torch.bfloat16) * 0.05)(B, S, Dm)), 'mem0': _w((lambda *s: torch.randn(*s, dtype=torch.bfloat16) * 0.8)(B, M, Dm)), 'Wq': _w((lambda *s: torch.randn(*s, dtype=torch.bfloat16) * 1.6)(Dm, H, Dh) * Dm ** (-0.5)), 'Wk': _w((lambda *s: torch.randn(*s, dtype=torch.bfloat16) * 1.6)(Dm, H, Dh) * Dm ** (-0.5)), 'Wv': _w((lambda *s: torch.randn(*s, dtype=torch.bfloat16) * 0.8)(Dm, H, Dh) * Dm ** (-0.5)), 'Wo': _w((lambda *s: torch.randn(*s, dtype=torch.bfloat16) * 0.8)(H, Dh, Dm) * (H * Dh) ** (-0.5)), 'seg_len': seg}
    _B_in = _B_setup()
    return {'A_x': _A_in['x'], 'A_wq': _A_in['wq'], 'A_wk': _A_in['wk'], 'A_wv': _A_in['wv'], 'A_wo': _A_in['wo'], 'B_x': _B_in['x'], 'B_mem0': _B_in['mem0'], 'B_Wq': _B_in['Wq'], 'B_Wk': _B_in['Wk'], 'B_Wv': _B_in['Wv'], 'B_Wo': _B_in['Wo'], 'B_seg_len': _B_in['seg_len']}

def reference(A_x, A_wq, A_wk, A_wv, A_wo, B_x, B_mem0, B_Wq, B_Wk, B_Wv, B_Wo, B_seg_len):

    def _A_ref(x, wq, wk, wv, wo):
        B, S, D = x.shape
        H = 32
        Dh = D // H
        q = (lambda x, *d: x.permute(*d))((x @ wq).reshape(B, S, H, Dh), 0, 2, 1, 3)
        k = x @ wk
        v = x @ wv
        scores = torch.einsum('bhqd,bkd->bhqk', q, k) * Dh ** (-0.5)
        p = _softmax(scores, axis=-1)
        o = torch.einsum('bhqk,bkd->bhqd', p, v)
        return (lambda x, *d: x.permute(*d))(o, 0, 2, 1, 3).reshape(B, S, H * Dh) @ wo

    def _B_ref(x, mem0, Wq, Wk, Wv, Wo, seg_len):
        B, S, Dm = x.shape
        H, Dh = (Wq.shape[1], Wq.shape[2])
        M = mem0.shape[1]
        scale = Dh ** (-0.5)
        n_seg = S // seg_len
        L = M + seg_len
        idx = torch.arange(L)
        mask = (idx[:, None] < M) | (idx[:, None] >= idx[None, :])
        mem = mem0
        outs = []
        for s in range(n_seg):
            xs = x[:, s * seg_len:(s + 1) * seg_len, :].clone()
            h = torch.concatenate([mem, xs], axis=1)
            q = torch.einsum('btd,dhe->bhte', h, Wq)
            k = torch.einsum('btd,dhe->bhte', h, Wk)
            v = torch.einsum('btd,dhe->bhte', h, Wv)
            scores = torch.einsum('bhqe,bhke->bhqk', q, k) * scale
            scores = torch.where(mask[None, None], scores, -1000000000.0)
            p = _softmax(scores, axis=-1)
            o = torch.einsum('bhqk,bhke->bhqe', p, v)
            o = torch.einsum('bhte,hed->btd', o, Wo)
            mem = o[:, :M, :].clone()
            outs.append(o[:, M:, :])
        return torch.concatenate(outs, axis=1)
    x = A_x
    x = x + _A_ref(_layernorm(x, axis=-1), A_wq, A_wk, A_wv, A_wo)
    x = x + _B_ref(_layernorm(x, axis=-1), B_mem0, B_Wq, B_Wk, B_Wv, B_Wo, B_seg_len)
    x = x + _A_ref(_layernorm(x, axis=-1), A_wq, A_wk, A_wv, A_wo)
    x = x + _B_ref(_layernorm(x, axis=-1), B_mem0, B_Wq, B_Wk, B_Wv, B_Wo, B_seg_len)
    return x
```

```python
from common import *

RS = 1040
C_A = 0.25 * math.log2(math.e)


def emit_ln(a, P, X, T):
    for i in range(16):
        a.e(f"v_lshlrev_b32 v{X+2*i}, 16, v{P+i}")
        a.e(f"v_and_b32 v{X+2*i+1}, 0xffff0000, v{P+i}")
    a.e(f"v_add_f32 v{T}, v{X}, v{X+1}")
    for i in range(2, 32):
        a.e(f"v_add_f32 v{T}, v{T}, v{X+i}")
    for sh in (8, 4, 2, 1):
        a.nop(2)
        a.e(f"v_add_f32_dpp v{T}, v{T}, v{T} row_ror:{sh} row_mask:0xf bank_mask:0xf")
    a.e(f"v_mul_f32 v{T+1}, 0x3b000000, v{T}")
    a.e(f"v_mov_b32 v{T+3}, 0")
    for i in range(32):
        a.e(f"v_sub_f32 v{T+2}, v{X+i}, v{T+1}")
        a.e(f"v_fmac_f32 v{T+3}, v{T+2}, v{T+2}")
    for sh in (8, 4, 2, 1):
        a.nop(2)
        a.e(f"v_add_f32_dpp v{T+3}, v{T+3}, v{T+3} row_ror:{sh} row_mask:0xf bank_mask:0xf")
    a.e(f"v_mul_f32 v{T+3}, 0x3b000000, v{T+3}      ; var")
    a.e(f"v_cvt_pk_bf16_f32 v{T+4}, v{T+1}, v{T+3}")
    a.e(f"v_lshlrev_b32 v{T+1}, 16, v{T+4}           ; bf16(mean)")
    a.e(f"v_and_b32 v{T+3}, 0xffff0000, v{T+4}       ; bf16(var)")
    a.e(f"v_add_f32 v{T+3}, 0x{f32bits(1e-5):08x}, v{T+3}")
    a.e(f"v_cvt_pk_bf16_f32 v{T+4}, v{T+3}, v{T+3}")
    a.e(f"v_lshlrev_b32 v{T+3}, 16, v{T+4}           ; bf16(var+eps)")
    a.e(f"v_sqrt_f32 v{T+3}, v{T+3}")
    a.nop(1)
    a.e(f"v_cvt_pk_bf16_f32 v{T+4}, v{T+3}, v{T+3}")
    a.e(f"v_lshlrev_b32 v{T+3}, 16, v{T+4}           ; bf16(sqrt)")
    a.e(f"v_rcp_f32 v{T+3}, v{T+3}")
    a.nop(1)
    for i in range(16):
        a.e(f"v_sub_f32 v{T+4}, v{X+2*i}, v{T+1}")
        a.e(f"v_sub_f32 v{T+5}, v{X+2*i+1}, v{T+1}")
        a.e(f"v_cvt_pk_bf16_f32 v{T+6}, v{T+4}, v{T+5}")
        a.e(f"v_lshlrev_b32 v{T+4}, 16, v{T+6}")
        a.e(f"v_and_b32 v{T+5}, 0xffff0000, v{T+6}")
        a.e(f"v_mul_f32 v{T+4}, v{T+3}, v{T+4}")
        a.e(f"v_mul_f32 v{T+5}, v{T+3}, v{T+5}")
        a.e(f"v_cvt_pk_bf16_f32 v{P+i}, v{T+4}, v{T+5}")


def gen_ka1(a, name, layer):
    kernel_header(a, name)
    END = a.newlabel("ka1_end")
    a.e("s_cmp_ge_u32 s2, 128")
    a.e(f"s_cbranch_scc1 {END}")
    a.e(f"s_load_dwordx2 s[4:5], s[0:1], {ARG_WS}")
    a.e(f"s_load_dwordx2 s[6:7], s[0:1], {ARG_AX}")
    a.e("v_and_b32 v1, 63, v0                 ; lane")
    a.e("v_lshrrev_b32 v2, 6, v0")
    a.nop(1)
    a.e("v_readfirstlane_b32 s16, v2          ; wave")
    a.e("v_lshrrev_b32 v2, 4, v1              ; g")
    a.e("v_and_b32 v3, 15, v1                 ; l16")
    a.e("s_waitcnt lgkmcnt(0)")
    srd(a, 8, 4, WS_BYTES)
    srd(a, 12, 6, 2048 * 512 * 2)
    a.e("s_lshl_b32 s3, s2, 14                ; tok0*1024")
    a.e("s_lshl_b32 s19, s16, 12              ; 4w*1024")
    a.e("s_add_u32 s3, s3, s19")
    a.e("v_lshlrev_b32 v4, 10, v2")
    a.e("v_lshl_add_u32 v4, v3, 6, v4")
    if layer == 0:
        for q in range(4):
            a.e(f"buffer_load_dwordx4 v[{16+4*q}:{19+4*q}], v4, s[12:15], s3 offen offset:{q*16}")
    else:
        a.e(f"s_add_u32 s3, s3, {X2}")
        for q in range(4):
            a.e(f"buffer_load_dwordx4 v[{16+4*q}:{19+4*q}], v4, s[8:11], s3 offen offset:{q*16}")
    a.e("s_waitcnt vmcnt(0)")
    emit_ln(a, 16, 64, 96)
    a.e("s_lshl_b32 s19, s16, 2")
    a.e("v_add_u32 v5, s19, v2                ; row")
    a.e(f"v_mul_u32_u24 v5, {RS}, v5")
    a.e("v_lshl_add_u32 v5, v3, 6, v5")
    for q in range(4):
        a.e(f"ds_write_b128 v5, v[{16+4*q}:{19+4*q}] offset:{q*16}")
    a.e("s_waitcnt lgkmcnt(0)")
    a.e("s_barrier")
    a.e(f"v_mul_u32_u24 v6, {RS}, v3")
    a.e("v_lshl_add_u32 v6, v2, 4, v6")
    a.e("v_lshlrev_b32 v7, 4, v1              ; lane*16")
    a.e("s_lshl_b32 s22, s16, 17")
    a.e(f"s_add_u32 s22, s22, {FA}")
    a.e("s_lshl_b32 s23, s16, 14")
    a.e(f"s_add_u32 s23, s23, {FA + 32*16384}")
    NT = 9
    ACC = 16
    WB = [52, 88]
    XF = [124, 128]

    def load_w(t, buf):
        for n in range(NT):
            if n < 8:
                base, imm = "s22", n * 16384 + t * 1024
            else:
                base, imm = "s23", t * 1024
            a.e(f"s_add_u32 s19, {base}, {imm}")
            a.e(f"buffer_load_dwordx4 v[{buf+4*n}:{buf+4*n+3}], v7, s[8:11], s19 offen")

    load_w(0, WB[0])
    a.e(f"ds_read_b128 v[{XF[0]}:{XF[0]+3}], v6")
    for t in range(16):
        if t + 1 < 16:
            load_w(t + 1, WB[(t + 1) % 2])
            a.e(f"ds_read_b128 v[{XF[(t+1)%2]}:{XF[(t+1)%2]+3}], v6 offset:{(t+1)*64}")
            a.e(f"s_waitcnt vmcnt({NT}) lgkmcnt(1)")
        else:
            a.e("s_waitcnt vmcnt(0) lgkmcnt(0)")
        wb, xf = WB[t % 2], XF[t % 2]
        for n in range(NT):
            d = ACC + 4 * n
            cin = "0" if t == 0 else f"v[{d}:{d+3}]"
            if n < 8 or True:
                pass
            if n == 8:
                continue
            a.e(f"v_mfma_f32_16x16x32_bf16 v[{d}:{d+3}], v[{wb+4*n}:{wb+4*n+3}], v[{xf}:{xf+3}], {cin}")
        d = ACC + 32
        cin = "0" if t == 0 else f"v[{d}:{d+3}]"
        a.e(f"v_mfma_f32_16x16x32_bf16 v[{d}:{d+3}], v[{wb+32}:{wb+35}], v[{xf}:{xf+3}], {cin}")
        cin = "0" if t == 0 else "v[132:135]"
        a.e(f"v_mfma_f32_16x16x32_bf16 v[132:135], v[{xf}:{xf+3}], v[{wb+32}:{wb+35}], {cin}")
    a.nop(8)
    a.e(f"s_mov_b32 s21, 0x{f32bits(C_A):08x}")
    a.e("v_lshlrev_b32 v8, 10, v3")
    a.e("v_lshl_add_u32 v8, v2, 3, v8")
    a.e("s_lshl_b32 s3, s2, 14")
    a.e("s_lshl_b32 s19, s16, 8")
    a.e("s_add_u32 s3, s3, s19")
    a.e(f"s_add_u32 s3, s3, {QA}")
    for n in range(8):
        d = ACC + 4 * n
        for r in range(4):
            a.e(f"v_mul_f32 v{d+r}, s21, v{d+r}")
        a.e(f"v_cvt_pk_bf16_f32 v{d}, v{d}, v{d+1}")
        a.e(f"v_cvt_pk_bf16_f32 v{d+1}, v{d+2}, v{d+3}")
        a.e(f"buffer_store_dwordx2 v[{d}:{d+1}], v8, s[8:11], s3 offen offset:{n*32}")
    LV = a.newlabel("ka1_v")
    a.e("s_cmp_eq_u32 s16, 1")
    a.e(f"s_cbranch_scc1 {LV}")
    a.e("s_cmp_lg_u32 s16, 0")
    a.e(f"s_cbranch_scc1 {END}")
    d = ACC + 32
    a.e(f"v_cvt_pk_bf16_f32 v{d}, v{d}, v{d+1}")
    a.e(f"v_cvt_pk_bf16_f32 v{d+1}, v{d+2}, v{d+3}")
    a.e("v_lshlrev_b32 v8, 5, v3              ; l16*32")
    a.e("v_lshl_add_u32 v8, v2, 3, v8")
    a.e("s_lshl_b32 s3, s2, 9                 ; tok0*32")
    a.e(f"s_add_u32 s3, s3, {KFA}")
    a.e(f"buffer_store_dwordx2 v[{d}:{d+1}], v8, s[8:11], s3 offen")
    a.e(f"s_branch {END}")
    a.label(LV)
    a.e("v_cvt_pk_bf16_f32 v132, v132, v133")
    a.e("v_cvt_pk_bf16_f32 v133, v134, v135")
    a.e("v_and_b32 v8, 1, v2")
    a.e("v_lshlrev_b32 v8, 8, v8")
    a.e("v_lshl_add_u32 v8, v3, 4, v8")
    a.e("v_lshrrev_b32 v9, 1, v2")
    a.e("v_lshl_add_u32 v8, v9, 3, v8")
    a.e("s_lshl_b32 s3, s2, 9                 ; kb*512")
    a.e(f"s_add_u32 s3, s3, {VFA}")
    a.e("buffer_store_dwordx2 v[132:133], v8, s[8:11], s3 offen")
    a.label(END)
    a.e("s_endpgm")
    a.lines.append(kernel_desc(name, 136, 136))


KA2_LDS = 131072


def gen_ka2(a, name):
    kernel_header(a, name)
    END = a.newlabel("ka2_end")
    a.e("s_cmp_ge_u32 s2, 256")
    a.e(f"s_cbranch_scc1 {END}")
    a.e(f"s_load_dwordx2 s[4:5], s[0:1], {ARG_WS}")
    a.e("v_and_b32 v1, 63, v0                 ; lane")
    a.e("v_lshrrev_b32 v2, 6, v0")
    a.nop(1)
    a.e("v_readfirstlane_b32 s16, v2          ; wave")
    a.e("s_waitcnt lgkmcnt(0)")
    srd(a, 8, 4, WS_BYTES)
    a.e("v_lshlrev_b32 v2, 4, v0              ; tid*16")
    for blk in range(2):
        for k in range(8):
            a.e(f"s_mov_b32 s19, {KFA + (blk*8+k)*8192}")
            a.e(f"buffer_load_dwordx4 v[{16+4*k}:{19+4*k}], v2, s[8:11], s19 offen")
        a.e(f"v_add_u32 v3, {blk*65536}, v2")
        for k in range(8):
            a.e(f"s_waitcnt vmcnt({7-k})")
            a.e(f"ds_write_b128 v3, v[{16+4*k}:{19+4*k}] offset:{k*8192}")
    a.e("v_and_b32 v4, 31, v1                 ; l%32")
    a.e("v_lshrrev_b32 v5, 5, v1              ; c")
    a.e("v_lshlrev_b32 v6, 5, v4")
    a.e("v_lshl_add_u32 v6, v5, 4, v6         ; (l%32)*32 + c*16")
    a.e("s_lshl_b32 s3, s2, 3")
    a.e("s_add_u32 s3, s3, s16                ; token")
    a.e("s_lshl_b32 s17, s3, 10")
    a.e(f"s_add_u32 s19, s17, {QA}")
    a.e("buffer_load_dwordx4 v[8:11], v6, s[8:11], s19 offen")
    a.e("v_lshlrev_b32 v7, 8, v5")
    a.e("v_lshl_add_u32 v7, v4, 4, v7")
    a.e("v_add_u32 v7, 65536, v7")
    a.e("v_mov_b32 v12, 0x3f803f80")
    a.e("v_cmp_eq_u32 vcc, 16, v4")
    a.nop(2)
    a.e("v_cndmask_b32 v12, 0, v12, vcc")
    for r in range(16, 32):
        a.e(f"v_mov_b32 v{r}, v12")
    a.e("s_mov_b32 s30, 0x0000ffff")
    a.e("s_mov_b32 s31, 0x0000ffff           ; exec mask: lanes with l%32 < 16")
    a.e("s_waitcnt vmcnt(0) lgkmcnt(0)")
    a.e("s_barrier")
    a.e("v_mov_b32 v112, 0xff800000")
    a.e("v_mov_b32 v113, 0xff800000")
    a.e("v_mov_b32 v114, 0xff800000")
    a.e("v_mov_b32 v115, 0xff800000")
    a.e("v_mov_b32 v13, v6                    ; K addr")
    a.e("ds_read_b128 v[32:35], v13")
    a.e("ds_read_b128 v[36:39], v13 offset:1024")
    a.e("s_mov_b32 s18, 0")
    L1 = a.newlabel("ka2_p1")
    a.label(L1)
    a.e("s_waitcnt lgkmcnt(1)")
    a.e("v_mfma_f32_32x32x16_bf16 v[48:63], v[32:35], v[8:11], 0")
    a.e("ds_read_b128 v[32:35], v13 offset:2048")
    a.e("s_waitcnt lgkmcnt(1)")
    a.e("v_mfma_f32_32x32x16_bf16 v[64:79], v[36:39], v[8:11], 0")
    a.e("ds_read_b128 v[36:39], v13 offset:3072")
    a.e("v_add_u32 v13, 2048, v13")
    a.nop(9)
    for i in range(0, 16, 4):
        a.e(f"v_max3_f32 v{112+i//4}, v{112+i//4}, v{48+i}, v{49+i}")
        a.e(f"v_max3_f32 v{112+i//4}, v{112+i//4}, v{50+i}, v{51+i}")
    a.nop(4)
    for i in range(0, 16, 4):
        a.e(f"v_max3_f32 v{112+i//4}, v{112+i//4}, v{64+i}, v{65+i}")
        a.e(f"v_max3_f32 v{112+i//4}, v{112+i//4}, v{66+i}, v{67+i}")
    a.e("s_add_u32 s18, s18, 2")
    a.e("s_cmp_lt_u32 s18, 64")
    a.e(f"s_cbranch_scc1 {L1}")
    a.e("v_max3_f32 v112, v112, v113, v114")
    a.e("v_max_f32 v112, v112, v115")
    a.e("v_mov_b32 v113, v112")
    a.nop(2)
    a.e("v_permlane32_swap_b32 v112, v113")
    a.nop(1)
    a.e("v_max_f32 v112, v112, v113")
    a.e("v_sub_f32 v112, 0, v112              ; -max")
    for r in range(80, 96):
        a.e(f"v_mov_b32 v{r}, v112")
    for r in range(96, 112):
        a.e(f"v_mov_b32 v{r}, 0")
    a.e("v_mov_b32 v13, v6")
    a.e("v_mov_b32 v14, v7                    ; V addr")
    a.e("ds_read_b128 v[32:35], v13")
    a.e("s_mov_b64 exec, s[30:31]")
    a.e("ds_read_b128 v[16:19], v14")
    a.e("ds_read_b128 v[20:23], v14 offset:512")
    a.e("s_mov_b64 exec, -1")
    a.e("s_mov_b32 s18, 0")
    L2 = a.newlabel("ka2_p2")
    a.label(L2)
    a.e("s_waitcnt lgkmcnt(2)")
    a.e("v_mfma_f32_32x32x16_bf16 v[48:63], v[32:35], v[8:11], v[80:95]")
    a.e("ds_read_b128 v[32:35], v13 offset:1024")
    a.e("v_add_u32 v13, 1024, v13")
    a.nop(10)
    for i in range(16):
        a.e(f"v_exp_f32 v{48+i}, v{48+i}")
    a.nop(1)
    for i in range(8):
        a.e(f"v_cvt_pk_bf16_f32 v{40+i}, v{48+2*i}, v{49+2*i}")
    a.e("s_waitcnt lgkmcnt(1)")
    a.nop(1)
    a.e("v_mfma_f32_32x32x16_bf16 v[96:111], v[16:19], v[40:43], v[96:111]")
    a.e("v_mfma_f32_32x32x16_bf16 v[96:111], v[20:23], v[44:47], v[96:111]")
    a.e("v_add_u32 v14, 1024, v14")
    a.e("s_add_u32 s18, s18, 1")
    a.e("s_cmp_lt_u32 s18, 64")
    DONE = a.newlabel("ka2_done")
    a.e(f"s_cbranch_scc0 {DONE}")
    a.e("s_mov_b64 exec, s[30:31]")
    a.e("ds_read_b128 v[16:19], v14")
    a.e("ds_read_b128 v[20:23], v14 offset:512")
    a.e("s_mov_b64 exec, -1")
    a.e(f"s_branch {L2}")
    a.label(DONE)
    a.e("s_waitcnt lgkmcnt(0)")
    a.nop(16)
    a.e("v_mov_b32 v112, v104")
    a.e("v_mov_b32 v113, v104")
    a.nop(2)
    a.e("v_permlane32_swap_b32 v112, v113")
    a.nop(1)
    a.e("v_rcp_f32 v112, v112")
    a.nop(1)
    for r in range(96, 104):
        a.e(f"v_mul_f32 v{r}, v112, v{r}")
    for k in range(4):
        a.e(f"v_cvt_pk_bf16_f32 v{96+k}, v{96+2*k}, v{97+2*k}")
    a.e("v_lshlrev_b32 v6, 5, v4")
    a.e("v_lshl_add_u32 v6, v5, 3, v6")
    a.e(f"s_add_u32 s19, s17, {OA}")
    a.e("buffer_store_dwordx2 v[96:97], v6, s[8:11], s19 offen")
    a.e("buffer_store_dwordx2 v[98:99], v6, s[8:11], s19 offen offset:16")
    a.label(END)
    a.e("s_endpgm")
    a.lines.append(kernel_desc(name, 128, 128))


def gen_ka3(a, name, layer):
    kernel_header(a, name)
    END = a.newlabel("ka3_end")
    a.e("s_cmp_ge_u32 s2, 128")
    a.e(f"s_cbranch_scc1 {END}")
    a.e(f"s_load_dwordx2 s[4:5], s[0:1], {ARG_WS}")
    a.e(f"s_load_dwordx2 s[6:7], s[0:1], {ARG_AX}")
    a.e("v_and_b32 v1, 63, v0                 ; lane")
    a.e("v_lshrrev_b32 v2, 6, v0")
    a.nop(1)
    a.e("v_readfirstlane_b32 s16, v2          ; wave")
    a.e("v_lshrrev_b32 v2, 4, v1              ; g")
    a.e("v_and_b32 v3, 15, v1                 ; l16")
    a.e("s_waitcnt lgkmcnt(0)")
    srd(a, 8, 4, WS_BYTES)
    srd(a, 12, 6, 2048 * 512 * 2)
    a.e("v_lshlrev_b32 v6, 10, v3")
    a.e("v_lshl_add_u32 v6, v2, 4, v6")
    a.e("s_lshl_b32 s3, s2, 14                ; tok0*1024")
    a.e(f"s_add_u32 s24, s3, {OA}")
    a.e("v_lshlrev_b32 v7, 4, v1              ; lane*16")
    a.e("s_lshl_b32 s22, s16, 17")
    a.e(f"s_add_u32 s22, s22, {FAO}")
    NT = 8
    ACC = 16
    WB = [48, 80]
    XF = [112, 116]

    def load_step(t, wbuf, xbuf):
        for n in range(NT):
            a.e(f"s_add_u32 s19, s22, {n*16384 + t*1024}")
            a.e(f"buffer_load_dwordx4 v[{wbuf+4*n}:{wbuf+4*n+3}], v7, s[8:11], s19 offen")
        a.e(f"buffer_load_dwordx4 v[{xbuf}:{xbuf+3}], v6, s[8:11], s24 offen offset:{t*64}")

    load_step(0, WB[0], XF[0])
    for t in range(16):
        if t + 1 < 16:
            load_step(t + 1, WB[(t + 1) % 2], XF[(t + 1) % 2])
            a.e(f"s_waitcnt vmcnt({NT+1})")
        else:
            a.e("s_waitcnt vmcnt(0)")
        wb, xf = WB[t % 2], XF[t % 2]
        for n in range(NT):
            d = ACC + 4 * n
            cin = "0" if t == 0 else f"v[{d}:{d+3}]"
            a.e(f"v_mfma_f32_16x16x32_bf16 v[{d}:{d+3}], v[{wb+4*n}:{wb+4*n+3}], v[{xf}:{xf+3}], {cin}")
    a.e("v_lshlrev_b32 v8, 10, v3")
    a.e("v_lshl_add_u32 v8, v2, 3, v8")
    a.e("s_lshl_b32 s19, s16, 8               ; 8w*16*2")
    a.e("s_add_u32 s3, s3, s19")
    if layer == 0:
        for n in range(NT):
            a.e(f"buffer_load_dwordx2 v[{48+2*n}:{49+2*n}], v8, s[12:15], s3 offen offset:{n*32}")
    else:
        a.e(f"s_add_u32 s3, s3, {X2}")
        for n in range(NT):
            a.e(f"buffer_load_dwordx2 v[{48+2*n}:{49+2*n}], v8, s[8:11], s3 offen offset:{n*32}")
    a.e(f"v_mul_u32_u24 v9, {RS}, v3")
    a.e("v_lshl_add_u32 v9, v2, 3, v9")
    a.e("v_add_u32 v9, s19, v9")
    a.e("s_waitcnt vmcnt(0)")
    for n in range(NT):
        d = ACC + 4 * n
        x0, x1 = 48 + 2 * n, 49 + 2 * n
        a.e(f"v_cvt_pk_bf16_f32 v{d}, v{d}, v{d+1}           ; bf16(out)")
        a.e(f"v_cvt_pk_bf16_f32 v{d+2}, v{d+2}, v{d+3}")
        a.e(f"v_lshlrev_b32 v100, 16, v{d}")
        a.e(f"v_and_b32 v101, 0xffff0000, v{d}")
        a.e(f"v_lshlrev_b32 v102, 16, v{d+2}")
        a.e(f"v_and_b32 v103, 0xffff0000, v{d+2}")
        a.e(f"v_lshlrev_b32 v104, 16, v{x0}")
        a.e(f"v_and_b32 v105, 0xffff0000, v{x0}")
        a.e(f"v_lshlrev_b32 v106, 16, v{x1}")
        a.e(f"v_and_b32 v107, 0xffff0000, v{x1}")
        a.e("v_add_f32 v100, v100, v104")
        a.e("v_add_f32 v101, v101, v105")
        a.e("v_add_f32 v102, v102, v106")
        a.e("v_add_f32 v103, v103, v107")
        a.e(f"v_cvt_pk_bf16_f32 v{d}, v100, v101")
        a.e(f"v_cvt_pk_bf16_f32 v{d+1}, v102, v103")
        a.e(f"ds_write_b64 v9, v[{d}:{d+1}] offset:{n*32}")
    a.e("s_waitcnt lgkmcnt(0)")
    a.e("s_barrier")
    a.e("s_lshl_b32 s19, s16, 2")
    a.e("v_add_u32 v5, s19, v2")
    a.e(f"v_mul_u32_u24 v10, {RS}, v5")
    a.e("v_lshl_add_u32 v10, v3, 6, v10")
    for q in range(4):
        a.e(f"ds_read_b128 v[{16+4*q}:{19+4*q}], v10 offset:{q*16}")
    a.e("v_lshlrev_b32 v11, 10, v5")
    a.e("v_lshl_add_u32 v11, v3, 6, v11")
    a.e("s_lshl_b32 s3, s2, 14")
    xdst = X1 if layer == 0 else X3
    a.e(f"s_add_u32 s24, s3, {xdst}")
    a.e(f"s_add_u32 s25, s3, {XN}")
    a.e("s_waitcnt lgkmcnt(0)")
    for q in range(4):
        a.e(f"buffer_store_dwordx4 v[{16+4*q}:{19+4*q}], v11, s[8:11], s24 offen offset:{q*16}")
    a.nop(2)
    emit_ln(a, 16, 64, 96)
    for q in range(4):
        a.e(f"buffer_store_dwordx4 v[{16+4*q}:{19+4*q}], v11, s[8:11], s25 offen offset:{q*16}")
    a.label(END)
    a.e("s_endpgm")
    a.lines.append(kernel_desc(name, 120, 120))
```

```python
from common import *
from alayer import RS

KB1_LDS = 128 * RS
SCALE_LOG2E_B = (128.0 ** -0.5) * math.log2(math.e)


def gen_kb1(a, name):
    kernel_header(a, name)
    END = a.newlabel("kb1_end")
    a.e("s_cmp_ge_u32 s2, 256")
    a.e(f"s_cbranch_scc1 {END}")
    a.e(f"s_load_dwordx2 s[4:5], s[0:1], {ARG_WS}")
    a.e("v_and_b32 v1, 63, v0                 ; lane")
    a.e("v_lshrrev_b32 v2, 6, v0")
    a.nop(1)
    a.e("v_readfirstlane_b32 s16, v2          ; wave")
    a.e("v_lshrrev_b32 v2, 4, v1              ; g")
    a.e("v_and_b32 v3, 15, v1                 ; l16")
    a.e("s_lshr_b32 s3, s2, 4")
    a.e("s_and_b32 s26, s2, 15                ; part")
    a.e("s_waitcnt lgkmcnt(0)")
    srd(a, 8, 4, WS_BYTES)
    a.e("v_lshlrev_b32 v7, 4, v1              ; lane*16")
    a.e("s_lshl_b32 s5, s3, 17                ; 128b*1024")
    a.e("s_lshl_b32 s19, s16, 10")
    a.e("s_add_u32 s5, s5, s19")
    a.e(f"s_add_u32 s5, s5, {XN}")
    a.e(f"s_mul_i32 s19, s16, {RS}")
    a.e("v_add_u32 v4, s19, v7")
    a.e(f"v_add_u32 v5, {16*4*RS}, v4")
    for blk in range(4):
        for k in range(8):
            a.e(f"s_add_u32 s19, s5, {(blk*8+k)*4096}")
            a.e(f"buffer_load_dwordx4 v[{16+4*k}:{19+4*k}], v7, s[8:11], s19 offen")
        for k in range(8):
            kk = blk * 8 + k
            a.e(f"s_waitcnt vmcnt({7-k})")
            if kk < 16:
                a.e(f"ds_write_b128 v4, v[{16+4*k}:{19+4*k}] offset:{kk*4*RS}")
            else:
                a.e(f"ds_write_b128 v5, v[{16+4*k}:{19+4*k}] offset:{(kk-16)*4*RS}")
    a.e(f"v_mul_u32_u24 v8, {RS}, v3")
    a.e("v_lshl_add_u32 v8, v2, 4, v8")
    a.e(f"v_add_u32 v9, {4*16*RS}, v8")
    a.e("s_waitcnt lgkmcnt(0)")
    a.e("s_barrier")
    ACC = 16
    XB = [80, 112]
    WB = [144, 152]

    def acc(t2, u):
        return ACC + (t2 * 8 + u) * 4

    def load_x(t, buf):
        for u in range(8):
            base = "v8" if u < 4 else "v9"
            a.e(f"ds_read_b128 v[{buf+4*u}:{buf+4*u+3}], {base} offset:{(u%4)*16*RS + t*64}")

    for hh in range(2):
        for mat in range(3):
            a.e(f"s_lshl_b32 s6, s26, 1")
            a.e(f"s_add_u32 s6, s6, {hh}                 ; h")
            a.e("s_lshl_b32 s22, s6, 17")
            a.e("s_lshl_b32 s19, s16, 15")
            a.e("s_add_u32 s22, s22, s19")
            a.e(f"s_add_u32 s22, s22, {FW + mat*4*MB}")

            def load_w(t, buf):
                for t2 in range(2):
                    a.e(f"s_add_u32 s19, s22, {t2*16384 + t*1024}")
                    a.e(f"buffer_load_dwordx4 v[{buf+4*t2}:{buf+4*t2+3}], v7, s[8:11], s19 offen")

            load_w(0, WB[0])
            load_x(0, XB[0])
            for t in range(16):
                if t + 1 < 16:
                    load_w(t + 1, WB[(t + 1) % 2])
                    load_x(t + 1, XB[(t + 1) % 2])
                    a.e("s_waitcnt vmcnt(2) lgkmcnt(8)")
                else:
                    a.e("s_waitcnt vmcnt(0) lgkmcnt(0)")
                wb, xb = WB[t % 2], XB[t % 2]
                for u in range(8):
                    for t2 in range(2):
                        d = acc(t2, u)
                        cin = "0" if t == 0 else f"v[{d}:{d+3}]"
                        if mat < 2:
                            a.e(f"v_mfma_f32_16x16x32_bf16 v[{d}:{d+3}], v[{wb+4*t2}:{wb+4*t2+3}], v[{xb+4*u}:{xb+4*u+3}], {cin}")
                        else:
                            a.e(f"v_mfma_f32_16x16x32_bf16 v[{d}:{d+3}], v[{xb+4*u}:{xb+4*u+3}], v[{wb+4*t2}:{wb+4*t2+3}], {cin}")
            a.nop(8)
            a.e("s_lshl_b32 s23, s3, 2                ; 4b")
            a.e("s_lshl_b32 s23, s23, 5")
            a.e("s_add_u32 s23, s23, s6               ; (4b)*32 + h")
            a.e("s_lshl_b32 s23, s23, 13")
            a.e("s_lshl_b32 s19, s16, 11")
            a.e("s_add_u32 s23, s23, s19")
            dst = [QX, KX, VX][mat]
            a.e(f"s_add_u32 s23, s23, {dst}")
            if mat < 2:
                for u in range(8):
                    a0, a1 = acc(0, u), acc(1, u)
                    d = 80 + 4 * (u % 2)
                    a.e(f"v_cvt_pk_bf16_f32 v{d}, v{a0}, v{a0+1}")
                    a.e(f"v_cvt_pk_bf16_f32 v{d+1}, v{a0+2}, v{a0+3}")
                    a.e(f"v_cvt_pk_bf16_f32 v{d+2}, v{a1}, v{a1+1}")
                    a.e(f"v_cvt_pk_bf16_f32 v{d+3}, v{a1+2}, v{a1+3}")
                    a.e(f"s_add_u32 s19, s23, {(u//2)*32*8192 + (u%2)*1024}")
                    a.e(f"buffer_store_dwordx4 v[{d}:{d+3}], v7, s[8:11], s19 offen")
                    a.nop(2)
            else:
                for sp in range(4):
                    for t2 in range(2):
                        A_, B_ = acc(t2, 2 * sp), acc(t2, 2 * sp + 1)
                        d = 80 + 4 * t2
                        a.e(f"v_cvt_pk_bf16_f32 v{d}, v{A_}, v{A_+1}")
                        a.e(f"v_cvt_pk_bf16_f32 v{d+1}, v{A_+2}, v{A_+3}")
                        a.e(f"v_cvt_pk_bf16_f32 v{d+2}, v{B_}, v{B_+1}")
                        a.e(f"v_cvt_pk_bf16_f32 v{d+3}, v{B_+2}, v{B_+3}")
                        a.e(f"s_add_u32 s19, s23, {sp*32*8192 + t2*1024}")
                        a.e(f"buffer_store_dwordx4 v[{d}:{d+3}], v7, s[8:11], s19 offen")
                        a.nop(2)
    a.label(END)
    a.e("s_endpgm")
    a.lines.append(kernel_desc(name, 160, 160))


def rowred(a, op, x, t):
    for swap in ("v_permlane16_swap_b32", "v_permlane32_swap_b32"):
        a.e(f"v_mov_b32 v{t}, v{x}")
        a.nop(2)
        a.e(f"{swap} v{x}, v{t}")
        a.nop(1)
        a.e(f"{op} v{x}, v{x}, v{t}")


def gen_kb3(a, name):
    kernel_header(a, name)
    END = a.newlabel("kb3_end")
    a.e("s_cmp_ge_u32 s2, 512")
    a.e(f"s_cbranch_scc1 {END}")
    a.e(f"s_load_dwordx2 s[4:5], s[0:1], {ARG_WS}")
    a.e("v_and_b32 v1, 63, v0                 ; lane")
    a.e("v_lshrrev_b32 v2, 6, v0")
    a.nop(1)
    a.e("v_readfirstlane_b32 s16, v2          ; wave")
    a.e("v_lshrrev_b32 v2, 4, v1              ; g")
    a.e("v_and_b32 v3, 15, v1                 ; l16")
    a.e("s_lshl_b32 s3, s2, 2")
    a.e("s_add_u32 s3, s3, s16                ; task = s*32 + h")
    a.e("s_waitcnt lgkmcnt(0)")
    srd(a, 8, 4, WS_BYTES)
    a.e("v_lshlrev_b32 v7, 4, v1              ; lane*16")
    a.e("s_lshl_b32 s6, s3, 13                ; task*8192")
    a.e("s_lshl_b32 s7, s3, 12                ; task*4096")
    a.e(f"s_add_u32 s19, s6, {QX}")
    a.e(f"s_add_u32 s22, s19, 4096")
    for i in range(8):
        sreg = "s19" if i < 4 else "s22"
        a.e(f"buffer_load_dwordx4 v[{16+4*i}:{19+4*i}], v7, s[8:11], {sreg} offen offset:{(i%4)*1024}")
    a.e(f"s_add_u32 s19, s6, {KX}")
    a.e(f"s_add_u32 s22, s19, 4096")
    for i in range(8):
        sreg = "s19" if i < 4 else "s22"
        a.e(f"buffer_load_dwordx4 v[{48+4*i}:{51+4*i}], v7, s[8:11], {sreg} offen offset:{(i%4)*1024}")
    a.e(f"s_add_u32 s19, s7, {KM}")
    for i in range(4):
        a.e(f"buffer_load_dwordx4 v[{80+4*i}:{83+4*i}], v7, s[8:11], s19 offen offset:{i*1024}")
    a.e(f"s_add_u32 s19, s6, {VX}")
    a.e(f"s_add_u32 s22, s19, 4096")
    for i in range(8):
        sreg = "s19" if i < 4 else "s22"
        a.e(f"buffer_load_dwordx4 v[{96+4*i}:{99+4*i}], v7, s[8:11], {sreg} offen offset:{(i%4)*1024}")
    a.e(f"s_add_u32 s19, s6, {VM}")
    a.e(f"s_add_u32 s22, s19, 4096")
    for i in range(8):
        sreg = "s19" if i < 4 else "s22"
        a.e(f"buffer_load_dwordx4 v[{128+4*i}:{131+4*i}], v7, s[8:11], {sreg} offen offset:{(i%4)*1024}")
    a.e("v_mov_b32 v10, 0xf149f2ca            ; -1e30")
    a.e("v_cmp_le_u32 vcc, 2, v2")
    a.nop(2)
    a.e("v_cndmask_b32 v160, 0, v10, vcc")
    for r in (161, 162, 163):
        a.e(f"v_mov_b32 v{r}, v160")
    a.e("v_lshlrev_b32 v11, 2, v2             ; 4g")
    for r in range(4):
        a.e(f"v_add_u32 v12, {r}, v11")
        a.e("v_cmp_gt_u32 vcc, v12, v3")
        a.nop(2)
        a.e(f"v_cndmask_b32 v{164+r}, 0, v10, vcc")
    a.e(f"s_mov_b32 s21, 0x{f32bits(SCALE_LOG2E_B):08x}")
    a.e("s_waitcnt vmcnt(0)")
    def S(uq, tile):
        return 168 + (uq * 3 + tile) * 4

    for uq in range(2):
        for c in range(4):
            q = 16 + (c * 2 + uq) * 4
            d = S(uq, 0)
            cin = "v[160:163]" if c == 0 else f"v[{d}:{d+3}]"
            a.e(f"v_mfma_f32_16x16x32_bf16 v[{d}:{d+3}], v[{80+4*c}:{83+4*c}], v[{q}:{q+3}], {cin}")
            d = S(uq, 1)
            cin = ("v[164:167]" if uq == 0 else "0") if c == 0 else f"v[{d}:{d+3}]"
            k0 = 48 + (c * 2 + 0) * 4
            a.e(f"v_mfma_f32_16x16x32_bf16 v[{d}:{d+3}], v[{k0}:{k0+3}], v[{q}:{q+3}], {cin}")
            if uq == 1:
                d = S(uq, 2)
                cin = "v[164:167]" if c == 0 else f"v[{d}:{d+3}]"
                k1 = 48 + (c * 2 + 1) * 4
                a.e(f"v_mfma_f32_16x16x32_bf16 v[{d}:{d+3}], v[{k1}:{k1+3}], v[{q}:{q+3}], {cin}")
    a.nop(8)
    for uq in range(2):
        nreg = 8 if uq == 0 else 12
        b0 = S(uq, 0)
        a.e(f"v_max3_f32 v4, v{b0}, v{b0+1}, v{b0+2}")
        i = 3
        while i + 1 < nreg:
            a.e(f"v_max3_f32 v4, v4, v{b0+i}, v{b0+i+1}")
            i += 2
        if i < nreg:
            a.e(f"v_max_f32 v4, v4, v{b0+i}")
        rowred(a, "v_max_f32", 4, 5)
        a.e("v_mul_f32 v4, s21, v4")
        for i in range(nreg):
            a.e(f"v_fma_f32 v{b0+i}, v{b0+i}, s21, -v4")
        for i in range(nreg):
            a.e(f"v_exp_f32 v{b0+i}, v{b0+i}")
        a.nop(1)
        a.e(f"v_add_f32 v5, v{b0}, v{b0+1}")
        for i in range(2, nreg):
            a.e(f"v_add_f32 v5, v5, v{b0+i}")
        rowred(a, "v_add_f32", 5, 6)
        a.e("v_rcp_f32 v5, v5")
        a.nop(1)
        for i in range(nreg):
            a.e(f"v_mul_f32 v{b0+i}, v5, v{b0+i}")
        pm, px = 192 + 8 * uq, 196 + 8 * uq
        a.e(f"v_cvt_pk_bf16_f32 v{pm}, v{b0}, v{b0+1}")
        a.e(f"v_cvt_pk_bf16_f32 v{pm+1}, v{b0+2}, v{b0+3}")
        a.e(f"v_mov_b32 v{pm+2}, 0")
        a.e(f"v_mov_b32 v{pm+3}, 0")
        a.e(f"v_cvt_pk_bf16_f32 v{px}, v{b0+4}, v{b0+5}")
        a.e(f"v_cvt_pk_bf16_f32 v{px+1}, v{b0+6}, v{b0+7}")
        if uq == 1:
            a.e(f"v_cvt_pk_bf16_f32 v{px+2}, v{b0+8}, v{b0+9}")
            a.e(f"v_cvt_pk_bf16_f32 v{px+3}, v{b0+10}, v{b0+11}")
        else:
            a.e(f"v_mov_b32 v{px+2}, 0")
            a.e(f"v_mov_b32 v{px+3}, 0")
    a.nop(2)
    def O(w, t2, uq):
        return 16 + ((w * 2 + t2) * 2 + uq) * 4
    for w in range(4):
        for t2 in range(2):
            vx = 96 + (w * 2 + t2) * 4
            vm = 128 + (w * 2 + t2) * 4
            for uq in range(2):
                d = O(w, t2, uq)
                pm, px = 192 + 8 * uq, 196 + 8 * uq
                a.e(f"v_mfma_f32_16x16x32_bf16 v[{d}:{d+3}], v[{vx}:{vx+3}], v[{px}:{px+3}], 0")
                a.e(f"v_mfma_f32_16x16x32_bf16 v[{d}:{d+3}], v[{vm}:{vm+3}], v[{pm}:{pm+3}], v[{d}:{d+3}]")
    a.nop(8)
    a.e(f"s_add_u32 s19, s6, {OF}")
    a.e(f"s_add_u32 s22, s19, 4096")
    for w in range(4):
        for uq in range(2):
            a0, a1 = O(w, 0, uq), O(w, 1, uq)
            d = 208 + 4 * uq
            a.e(f"v_cvt_pk_bf16_f32 v{d}, v{a0}, v{a0+1}")
            a.e(f"v_cvt_pk_bf16_f32 v{d+1}, v{a0+2}, v{a0+3}")
            a.e(f"v_cvt_pk_bf16_f32 v{d+2}, v{a1}, v{a1+1}")
            a.e(f"v_cvt_pk_bf16_f32 v{d+3}, v{a1+2}, v{a1+3}")
            i = w * 2 + uq
            sreg = "s19" if i < 4 else "s22"
            a.e(f"buffer_store_dwordx4 v[{d}:{d+3}], v7, s[8:11], {sreg} offen offset:{(i%4)*1024}")
            a.nop(2)
    a.label(END)
    a.e("s_endpgm")
    a.lines.append(kernel_desc(name, 216, 216))


def gen_kb4(a, name, layer):
    kernel_header(a, name)
    END = a.newlabel("kb4_end")
    a.e("s_cmp_ge_u32 s2, 256")
    a.e(f"s_cbranch_scc1 {END}")
    a.e(f"s_load_dwordx2 s[4:5], s[0:1], {ARG_WS}")
    a.e(f"s_load_dwordx2 s[6:7], s[0:1], {ARG_OUT}")
    a.e("v_and_b32 v1, 63, v0                 ; lane")
    a.e("v_lshrrev_b32 v2, 6, v0")
    a.nop(1)
    a.e("v_readfirstlane_b32 s16, v2          ; wave")
    a.e("v_lshrrev_b32 v2, 4, v1              ; g")
    a.e("v_and_b32 v3, 15, v1                 ; l16")
    a.e("s_lshr_b32 s3, s2, 3")
    a.e("s_and_b32 s26, s2, 7")
    a.e("s_waitcnt lgkmcnt(0)")
    srd(a, 8, 4, WS_BYTES)
    srd(a, 12, 6, 2048 * 512 * 2)
    a.e("v_lshlrev_b32 v7, 4, v1              ; lane*16")
    a.e("s_lshl_b32 s5, s26, 2")
    a.e("s_add_u32 s5, s5, s16                ; CT")
    a.e("s_lshl_b32 s5, s5, 12")
    a.e(f"s_add_u32 s5, s5, {WOF}              ; + h*131072 + c*1024")
    a.e("s_lshl_b32 s17, s3, 19               ; 2tg*32*8192")
    a.e(f"s_add_u32 s17, s17, {OF}")
    ACC = 16
    NB = 3
    WBUF = [32 + 4 * i for i in range(NB)]
    OBUF = [48 + 16 * i for i in range(NB)]

    def load(k, buf):
        h, c = k // 4, k % 4
        a.e(f"s_add_u32 s19, s5, {h*131072 + c*1024}")
        a.e(f"buffer_load_dwordx4 v[{WBUF[buf]}:{WBUF[buf]+3}], v7, s[8:11], s19 offen")
        for tt in range(4):
            seg, u = tt // 2, tt % 2
            a.e(f"s_add_u32 s19, s17, {seg*32*8192 + h*8192 + c*2048 + u*1024}")
            a.e(f"buffer_load_dwordx4 v[{OBUF[buf]+4*tt}:{OBUF[buf]+4*tt+3}], v7, s[8:11], s19 offen")

    NK = 128
    for k in range(NB - 1):
        load(k, k)
    for k in range(NK):
        if k + NB - 1 < NK:
            load(k + NB - 1, (k + NB - 1) % NB)
            a.e(f"s_waitcnt vmcnt({5*(NB-1)})")
        else:
            a.e(f"s_waitcnt vmcnt({5*(NK-1-k)})")
        b = k % NB
        for tt in range(4):
            d = ACC + 4 * tt
            cin = "0" if k == 0 else f"v[{d}:{d+3}]"
            a.e(f"v_mfma_f32_16x16x32_bf16 v[{d}:{d+3}], v[{WBUF[b]}:{WBUF[b]+3}], v[{OBUF[b]+4*tt}:{OBUF[b]+4*tt+3}], {cin}")
    a.e("s_lshl_b32 s5, s26, 2")
    a.e("s_add_u32 s5, s5, s16")
    a.e("s_lshl_b32 s5, s5, 5                 ; 16CT*2")
    a.e("s_lshl_b32 s19, s3, 16               ; 64tg*1024")
    a.e("s_add_u32 s5, s5, s19")
    a.e("v_lshlrev_b32 v8, 10, v3")
    a.e("v_lshl_add_u32 v8, v2, 3, v8")
    xsrc = X1 if layer == 0 else X3
    a.e(f"s_add_u32 s18, s5, {xsrc}")
    for tt in range(4):
        a.e(f"s_add_u32 s19, s18, {tt*16384}")
        a.e(f"buffer_load_dwordx2 v[{32+2*tt}:{33+2*tt}], v8, s[8:11], s19 offen")
    a.e("s_waitcnt vmcnt(0)")
    for tt in range(4):
        d = ACC + 4 * tt
        x0, x1 = 32 + 2 * tt, 33 + 2 * tt
        a.e(f"v_cvt_pk_bf16_f32 v{d}, v{d}, v{d+1}")
        a.e(f"v_cvt_pk_bf16_f32 v{d+2}, v{d+2}, v{d+3}")
        a.e(f"v_lshlrev_b32 v100, 16, v{d}")
        a.e(f"v_and_b32 v101, 0xffff0000, v{d}")
        a.e(f"v_lshlrev_b32 v102, 16, v{d+2}")
        a.e(f"v_and_b32 v103, 0xffff0000, v{d+2}")
        a.e(f"v_lshlrev_b32 v104, 16, v{x0}")
        a.e(f"v_and_b32 v105, 0xffff0000, v{x0}")
        a.e(f"v_lshlrev_b32 v106, 16, v{x1}")
        a.e(f"v_and_b32 v107, 0xffff0000, v{x1}")
        a.e("v_add_f32 v100, v100, v104")
        a.e("v_add_f32 v101, v101, v105")
        a.e("v_add_f32 v102, v102, v106")
        a.e("v_add_f32 v103, v103, v107")
        a.e(f"v_cvt_pk_bf16_f32 v{d}, v100, v101")
        a.e(f"v_cvt_pk_bf16_f32 v{d+1}, v102, v103")
        if layer == 0:
            a.e(f"s_add_u32 s19, s5, {X2 + tt*16384}")
            a.e(f"buffer_store_dwordx2 v[{d}:{d+1}], v8, s[8:11], s19 offen")
        else:
            a.e(f"s_add_u32 s19, s5, {tt*16384}")
            a.e(f"buffer_store_dwordx2 v[{d}:{d+1}], v8, s[12:15], s19 offen")
    a.label(END)
    a.e("s_endpgm")
    a.lines.append(kernel_desc(name, 112, 112))
```

```python
from common import *

L_WO = 0
L_MF = 131072
L_XQ = 147456
L_RED = L_XQ
LDS_BYTES = L_XQ + 3 * 4096

OOB = 0x40000000

SCALE_LOG2E = (128.0 ** -0.5) * math.log2(math.e)


def check_tags(a, R, n, vtag, t0, t1, t2):
    a.e(f"v_xor_b32 v{t0}, v{R}, v{vtag}")
    a.e(f"v_xor_b32 v{t1}, v{R+1}, v{vtag}")
    a.e(f"v_xor_b32 v{t2}, v{R+2}, v{vtag}")
    a.e(f"v_or3_b32 v{t0}, v{t0}, v{t1}, v{t2}")
    i = 3
    while i + 1 < n:
        a.e(f"v_xor_b32 v{t1}, v{R+i}, v{vtag}")
        a.e(f"v_xor_b32 v{t2}, v{R+i+1}, v{vtag}")
        a.e(f"v_or3_b32 v{t0}, v{t0}, v{t1}, v{t2}")
        i += 2
    if i < n:
        a.e(f"v_xor_b32 v{t1}, v{R+i}, v{vtag}")
        a.e(f"v_or_b32 v{t0}, v{t0}, v{t1}")
    a.e(f"v_and_b32 v{t0}, 3, v{t0}")
    a.e(f"v_cmp_ne_u32 vcc, 0, v{t0}")


def rowmax_or_sum(a, op, x, t):
    for swap in ("v_permlane16_swap_b32", "v_permlane32_swap_b32"):
        a.e(f"v_mov_b32 v{t}, v{x}")
        a.nop(2)
        a.e(f"{swap} v{x}, v{t}")
        a.nop(1)
        a.e(f"{op} v{x}, v{x}, v{t}")


STAMPS = []
def gen_chain(a, name, layer, pollbudget=1 << 22, instr=False, spread=8, plain=False):
    nst = [0]
    def stamp(tag):
        if not instr:
            return
        i = nst[0]; nst[0] += 1
        STAMPS.append(tag)
        a.e("s_memtime s[30:31]")
        a.e("s_waitcnt lgkmcnt(0)")
        a.e("s_cmp_eq_u32 s17, 20")
        a.e(f"s_cselect_b32 s{40+i}, s30, s{40+i}")
    XSET = XCH + layer * XCH_SET
    INBOX = XSET + INBOX_OFF
    MEMX = XSET + MEMX_OFF
    END = a.newlabel("chain_end")
    END0 = a.newlabel("chain_exit")
    BAIL = a.newlabel("chain_bail")

    kernel_header(a, name)
    a.e("s_cmp_ge_u32 s2, 256")
    a.e(f"s_cbranch_scc1 {END0}")
    if spread == 8:
        a.e("s_and_b32 s3, s2, 7")
        a.e("s_cmp_lg_u32 s3, 0")
        a.e(f"s_cbranch_scc1 {END0}")
        a.e("s_lshr_b32 s3, s2, 3                 ; h = head")
    else:
        a.e("s_cmp_ge_u32 s2, 32")
        a.e(f"s_cbranch_scc1 {END0}")
        a.e("s_mov_b32 s3, s2                     ; h = head")
    a.e(f"s_load_dwordx2 s[4:5], s[0:1], {ARG_MEM0}")
    a.e(f"s_load_dwordx2 s[6:7], s[0:1], {ARG_WS}")
    a.e("v_and_b32 v12, 63, v0                ; lane")
    a.e("v_lshrrev_b32 v13, 6, v0")
    a.nop(1)
    a.e("v_readfirstlane_b32 s16, v13")
    a.e("s_waitcnt lgkmcnt(0)")
    srd(a, 8, 6, WS_BYTES)
    srd(a, 12, 4, 8192)
    a.e("s_mov_b32 s20, 0x07060302")
    a.e(f"s_mov_b32 s21, 0x{f32bits(SCALE_LOG2E):08x}")
    a.e(f"s_mov_b32 s29, {pollbudget}")
    a.e("v_lshlrev_b32 v1, 4, v12             ; lane*16")
    a.e("v_lshrrev_b32 v13, 4, v12            ; g")
    a.e("v_and_b32 v14, 15, v12               ; l16")
    a.e("v_lshlrev_b32 v2, 8, v13")
    a.e("v_lshl_add_u32 v2, v14, 4, v2")
    a.e(f"v_add_u32 v2, {L_MF}, v2")
    a.e("s_lshl_b32 s19, s16, 10")
    a.e(f"s_add_u32 s19, s19, {L_XQ}")
    a.e("v_add_u32 v3, s19, v1")
    a.e(f"v_add_u32 v15, {L_XQ}, v1")
    a.e("s_lshl_b32 s19, s16, 15")
    a.e("v_add_u32 v4, s19, v1")
    a.e("v_and_b32 v16, 7, v12                ; i")
    a.e("v_bfe_u32 v17, v12, 3, 1             ; half")
    a.e("v_lshlrev_b32 v5, 8, v13")
    a.e("v_lshl_add_u32 v5, v16, 4, v5")
    a.e("v_lshl_add_u32 v5, v17, 3, v5")
    a.e("s_lshl_b32 s19, s16, 12")
    a.e(f"s_add_u32 s19, s19, {L_MF}")
    a.e("v_add_u32 v5, s19, v5")
    a.e("v_lshlrev_b32 v6, 11, v16")
    a.e("v_lshl_add_u32 v6, v13, 5, v6")
    a.e("v_lshl_add_u32 v6, v17, 4, v6")
    a.e("s_lshl_b32 s19, s16, 9")
    a.e(f"s_add_u32 s19, s19, {MEMX}")
    a.e("v_add_u32 v6, s19, v6")
    a.e("v_lshlrev_b32 v18, 10, v16")
    a.e("v_lshl_add_u32 v18, v13, 4, v18")
    a.e("v_lshl_add_u32 v18, v17, 3, v18")
    a.e("s_lshl_b32 s19, s16, 8")
    a.e("v_add_u32 v18, s19, v18")
    a.e("v_lshlrev_b32 v7, 6, v14")
    a.e("v_lshl_add_u32 v7, v13, 4, v7")
    a.e("s_lshl_b32 s19, s16, 17")
    a.e("s_lshl_b32 s22, s3, 9")
    a.e("s_add_u32 s19, s19, s22")
    a.e(f"s_add_u32 s19, s19, {INBOX}")
    a.e("v_add_u32 v7, s19, v7")
    a.e(f"v_mov_b32 v19, {OOB}")
    a.e("v_cmp_gt_u32 vcc, 8, v14")
    a.nop(2)
    a.e("v_cndmask_b32 v7, v19, v7, vcc")
    a.e("v_lshrrev_b32 v8, 5, v0")
    a.e("v_lshlrev_b32 v8, 11, v8")
    a.e("v_and_b32 v9, 31, v0")
    a.e("v_lshl_add_u32 v8, v9, 4, v8")
    a.e("s_lshl_b32 s19, s3, 14")
    a.e(f"s_add_u32 s19, s19, {INBOX}")
    a.e("v_add_u32 v8, s19, v8")
    a.e("v_lshlrev_b32 v9, 4, v0")
    a.e(f"v_add_u32 v9, {L_RED}, v9")
    a.e("v_lshrrev_b32 v10, 2, v12")
    a.e("v_lshlrev_b32 v10, 11, v10")
    a.e("v_and_b32 v11, 3, v12")
    a.e("v_lshl_add_u32 v10, v11, 4, v10")
    a.e("s_lshl_b32 s19, s3, 6")
    a.e(f"s_add_u32 s19, s19, {MEMX}")
    a.e("v_add_u32 v10, s19, v10")
    a.e("v_cmp_gt_u32 vcc, 32, v12")
    a.nop(2)
    a.e("v_cndmask_b32 v10, v19, v10, vcc")
    a.e("v_mov_b32 v11, 0xf149f2ca            ; -1e30")
    a.e("v_cmp_le_u32 vcc, 2, v13")
    a.nop(2)
    a.e("v_cndmask_b32 v16, 0, v11, vcc")
    a.e("v_mov_b32 v17, v16")
    a.e("v_mov_b32 v18, v18")
    a.e("v_mov_b32 v20, 0")
    a.e("v_mov_b32 v21, 0")
    a.e("v_mov_b32 v22, 0")
    a.e("v_mov_b32 v23, 0")
    a.e("v_lshlrev_b32 v11, 4, v0")
    a.e(f"v_add_u32 v11, {L_MF}, v11")
    for k in range(4):
        a.e(f"ds_write_b128 v11, v[20:23] offset:{k*4096}")
    for q in range(4):
        a.e(f"buffer_load_dwordx2 v[{96+2*q}:{97+2*q}], v18, s[12:15], 0 offen offset:{q*64}")
    a.e("v_lshlrev_b32 v11, 4, v0              ; tid*16")
    a.e("s_lshl_b32 s22, s3, 17")
    a.e(f"s_add_u32 s22, s22, {WOF}")
    for blk in range(4):
        for k in range(8):
            a.e(f"s_add_u32 s19, s22, {(blk*8+k)*4096}")
            a.e(f"buffer_load_dwordx4 v[{32+4*k}:{35+4*k}], v11, s[8:11], s19 offen")
        a.e(f"v_add_u32 v12, {blk*32768}, v11")
        for k in range(8):
            a.e(f"s_waitcnt vmcnt({7-k})")
            a.e(f"ds_write_b128 v12, v[{32+4*k}:{35+4*k}] offset:{k*4096}")
    a.e("s_waitcnt vmcnt(0)")
    for q in range(4):
        a.e(f"ds_write_b64 v5, v[{96+2*q}:{97+2*q}] offset:{q*1024}")
    a.e("s_lshl_b32 s22, s3, 17               ; h*8*16384")
    a.e("s_lshl_b32 s19, s16, 15              ; 2w*16384")
    a.e("s_add_u32 s22, s22, s19")
    for mat in range(3):
        for t2 in range(2):
            base = FW + mat * 4 * MB + t2 * 16384
            for tq in range(4):
                a.e(f"s_add_u32 s19, s22, {base + tq*4096}")
                for tr in range(4):
                    t = tq * 4 + tr
                    ai = ((mat * 2 + t2) * 16 + t) * 4
                    if mat < 2:
                        a.e(f"buffer_load_dwordx4 a[{ai}:{ai+3}], v1, s[8:11], s19 offen offset:{tr*1024}")
                    else:
                        vi = 128 + ai - 256
                        a.e(f"buffer_load_dwordx4 v[{vi}:{vi+3}], v1, s[8:11], s19 offen offset:{tr*1024}")
    a.e("v_mov_b32 v18, v16")
    a.e("v_mov_b32 v19, v16")
    for r in (22, 23, 26, 27, 30, 31):
        a.e(f"v_mov_b32 v{r}, 0")
    a.e("s_mov_b32 s17, 0                     ; step")
    a.e("s_lshl_b32 s23, s3, 13               ; (s*32+h)*8192 for s = 0")
    a.e(f"s_add_u32 s19, s23, {KX}")
    a.e(f"s_add_u32 s22, s19, 4096")
    for cu in range(8):
        sreg = "s19" if cu < 4 else "s22"
        a.e(f"buffer_load_dwordx4 v[{32+4*cu}:{35+4*cu}], v1, s[8:11], {sreg} offen offset:{(cu%4)*1024}")
    a.e("s_lshl_b32 s19, s16, 11")
    a.e("s_add_u32 s19, s19, s23")
    a.e(f"s_add_u32 s19, s19, {VX}")
    for t2 in range(2):
        a.e(f"buffer_load_dwordx4 v[{64+4*t2}:{67+4*t2}], v1, s[8:11], s19 offen offset:{t2*1024}")
    a.e("s_waitcnt vmcnt(0) lgkmcnt(0)")
    a.e("s_barrier")

    STEP = a.newlabel("chain_step")
    a.label(STEP)
    stamp("step start")
    a.e("s_add_u32 s18, s17, 1")
    a.e("s_and_b32 s18, s18, 3")
    a.e("v_mov_b32 v11, s18")
    F = [96, 100, 104]
    ACC = [72, 76, 80, 84, 88, 92]
    for k in range(3):
        a.e(f"ds_read_b128 v[{F[k]}:{F[k]+3}], v2 offset:{k*1024}")
    for t in range(16):
        a.e(f"s_waitcnt lgkmcnt({min(2, 15-t)})")
        f = F[t % 3]
        for idx in range(6):
            ai = (idx * 16 + t) * 4
            d = ACC[idx]
            cin = "0" if t == 0 else f"v[{d}:{d+3}]"
            if idx < 4:
                a.e(f"v_mfma_f32_16x16x32_bf16 v[{d}:{d+3}], a[{ai}:{ai+3}], v[{f}:{f+3}], {cin}")
            else:
                vi = 128 + ai - 256
                a.e(f"v_mfma_f32_16x16x32_bf16 v[{d}:{d+3}], v[{f}:{f+3}], v[{vi}:{vi+3}], {cin}")
        if t + 3 < 16:
            a.e(f"ds_read_b128 v[{f}:{f+3}], v2 offset:{(t+3)*1024}")
    a.nop(8)
    stamp("P1 done")
    for j in range(2):
        a.e(f"v_cvt_pk_bf16_f32 v{108+2*j}, v{72+4*j}, v{73+4*j}")
        a.e(f"v_cvt_pk_bf16_f32 v{109+2*j}, v{74+4*j}, v{75+4*j}")
    for j in range(2):
        a.e(f"v_cvt_pk_bf16_f32 v{112+2*j}, v{80+4*j}, v{81+4*j}")
        a.e(f"v_cvt_pk_bf16_f32 v{113+2*j}, v{82+4*j}, v{83+4*j}")
    a.e("v_cvt_pk_bf16_f32 v20, v88, v89")
    a.e("v_cvt_pk_bf16_f32 v21, v90, v91")
    a.e("v_cvt_pk_bf16_f32 v24, v92, v93")
    a.e("v_cvt_pk_bf16_f32 v25, v94, v95")
    a.e("ds_write_b128 v3, v[108:111]")
    a.e("ds_write_b128 v3, v[112:115] offset:4096")
    a.e("s_lshl_b32 s23, s17, 5")
    a.e("s_add_u32 s23, s23, s3                ; s*32+h")
    a.e("s_lshl_b32 s19, s23, 12")
    a.e("s_lshl_b32 s22, s16, 10")
    a.e("s_add_u32 s19, s19, s22")
    a.e(f"s_add_u32 s19, s19, {KM}")
    a.e("buffer_store_dwordx4 v[112:115], v1, s[8:11], s19 offen")
    a.e("s_lshl_b32 s19, s23, 13")
    a.e("s_lshl_b32 s22, s16, 11")
    a.e("s_add_u32 s19, s19, s22")
    a.e(f"s_add_u32 s19, s19, {VM}")
    a.e("buffer_store_dwordx4 v[20:23], v1, s[8:11], s19 offen")
    a.e("buffer_store_dwordx4 v[24:27], v1, s[8:11], s19 offen offset:1024")
    a.e("s_cmp_eq_u32 s17, 63")
    a.e(f"s_cbranch_scc1 {END}")
    a.e("s_waitcnt lgkmcnt(0)")
    a.e("s_barrier")
    stamp("qk barrier")
    QF = [72, 76, 80, 84]
    KF = [96, 100, 104, 108]
    for c in range(4):
        a.e(f"ds_read_b128 v[{KF[c]}:{KF[c]+3}], v15 offset:{4096 + c*1024}")
        a.e(f"ds_read_b128 v[{QF[c]}:{QF[c]+3}], v15 offset:{c*1024}")
    S0, S1, S2 = 112, 116, 120
    for c in range(4):
        a.e(f"s_waitcnt lgkmcnt({6-2*c})")
        c0 = "v[16:19]" if c == 0 else f"v[{S0}:{S0+3}]"
        c1 = "0" if c == 0 else f"v[{S1}:{S1+3}]"
        c2 = "0" if c == 0 else f"v[{S2}:{S2+3}]"
        a.e(f"v_mfma_f32_16x16x32_bf16 v[{S0}:{S0+3}], v[{KF[c]}:{KF[c]+3}], v[{QF[c]}:{QF[c]+3}], {c0}")
        kx0 = 32 + (c * 2 + 0) * 4
        kx1 = 32 + (c * 2 + 1) * 4
        a.e(f"v_mfma_f32_16x16x32_bf16 v[{S1}:{S1+3}], v[{kx0}:{kx0+3}], v[{QF[c]}:{QF[c]+3}], {c1}")
        a.e(f"v_mfma_f32_16x16x32_bf16 v[{S2}:{S2+3}], v[{kx1}:{kx1+3}], v[{QF[c]}:{QF[c]+3}], {c2}")
    a.e("s_add_u32 s23, s17, 1")
    a.e("s_lshl_b32 s23, s23, 5")
    a.e("s_add_u32 s23, s23, s3")
    a.e("s_lshl_b32 s23, s23, 13              ; ((s+1)*32+h)*8192")
    a.e(f"s_add_u32 s19, s23, {KX}")
    a.e(f"s_add_u32 s22, s19, 4096")
    for cu in range(8):
        sreg = "s19" if cu < 4 else "s22"
        a.e(f"buffer_load_dwordx4 v[{32+4*cu}:{35+4*cu}], v1, s[8:11], {sreg} offen offset:{(cu%4)*1024}")
    a.e("v_max3_f32 v124, v112, v113, v114")
    a.e("v_max3_f32 v125, v115, v116, v117")
    a.e("v_max3_f32 v126, v118, v119, v120")
    a.e("v_max3_f32 v127, v121, v122, v123")
    a.e("v_max3_f32 v124, v124, v125, v126")
    a.e("v_max_f32 v124, v124, v127")
    rowmax_or_sum(a, "v_max_f32", 124, 125)
    a.e("v_mul_f32 v124, s21, v124")
    for i in range(12):
        a.e(f"v_fma_f32 v{112+i}, v{112+i}, s21, -v124")
    for i in range(12):
        a.e(f"v_exp_f32 v{112+i}, v{112+i}")
    a.nop(1)
    a.e("v_add_f32 v125, v112, v113")
    a.e("v_add_f32 v126, v114, v115")
    a.e("v_add_f32 v127, v116, v117")
    a.e("v_add_f32 v88, v118, v119")
    a.e("v_add_f32 v89, v120, v121")
    a.e("v_add_f32 v90, v122, v123")
    a.e("v_add_f32 v125, v125, v126")
    a.e("v_add_f32 v127, v127, v88")
    a.e("v_add_f32 v89, v89, v90")
    a.e("v_add_f32 v125, v125, v127")
    a.e("v_add_f32 v125, v125, v89")
    rowmax_or_sum(a, "v_add_f32", 125, 126)
    a.e("v_rcp_f32 v125, v125")
    a.nop(1)
    for i in range(12):
        a.e(f"v_mul_f32 v{112+i}, v125, v{112+i}")
    a.e("v_cvt_pk_bf16_f32 v28, v112, v113")
    a.e("v_cvt_pk_bf16_f32 v29, v114, v115")
    a.e("v_cvt_pk_bf16_f32 v88, v116, v117")
    a.e("v_cvt_pk_bf16_f32 v89, v118, v119")
    a.e("v_cvt_pk_bf16_f32 v90, v120, v121")
    a.e("v_cvt_pk_bf16_f32 v91, v122, v123")
    a.nop(2)
    stamp("softmax done")
    a.e("v_mfma_f32_16x16x32_bf16 v[72:75], v[64:67], v[88:91], 0")
    a.e("v_mfma_f32_16x16x32_bf16 v[76:79], v[68:71], v[88:91], 0")
    a.e("v_mfma_f32_16x16x32_bf16 v[72:75], v[20:23], v[28:31], v[72:75]")
    a.e("v_mfma_f32_16x16x32_bf16 v[76:79], v[24:27], v[28:31], v[76:79]")
    a.e("s_lshl_b32 s19, s16, 11")
    a.e("s_add_u32 s19, s19, s23")
    a.e(f"s_add_u32 s19, s19, {VX}")
    for t2 in range(2):
        a.e(f"buffer_load_dwordx4 v[{64+4*t2}:{67+4*t2}], v1, s[8:11], s19 offen offset:{t2*1024}")
    a.nop(6)
    a.e("v_cvt_pk_bf16_f32 v92, v72, v73")
    a.e("v_cvt_pk_bf16_f32 v93, v74, v75")
    a.e("v_cvt_pk_bf16_f32 v94, v76, v77")
    a.e("v_cvt_pk_bf16_f32 v95, v78, v79")
    a.e("ds_write_b128 v3, v[92:95] offset:8192")
    a.e("s_waitcnt lgkmcnt(0)")
    a.e("s_barrier")
    stamp("o barrier")
    OFR = [96, 100, 104, 108]
    for c in range(4):
        a.e(f"ds_read_b128 v[{OFR[c]}:{OFR[c]+3}], v15 offset:{8192 + c*1024}")
    WA = [72, 76, 80]
    for k in range(3):
        a.e(f"ds_read_b128 v[{WA[k]}:{WA[k]+3}], v4 offset:{k*1024}")

    def emit_store(T):
        acc = 112 + 4 * (T % 4)
        for r in range(4):
            a.e(f"v_and_or_b32 v{acc+r}, v{acc+r}, -4, v11")
        a.e(f"s_mov_b32 s19, {T*16384}")
        a.e(f"buffer_store_dwordx4 v[{acc}:{acc+3}], v7, s[8:11], s19 offen" + ("" if plain else " sc1"))

    for T in range(8):
        acc = 112 + 4 * (T % 4)
        for c in range(4):
            idx = T * 4 + c
            if idx == 0:
                a.e("s_waitcnt lgkmcnt(2)")
            else:
                a.e(f"s_waitcnt lgkmcnt({min(2, 31-idx)})")
            wa = WA[idx % 3]
            cin = "0" if c == 0 else f"v[{acc}:{acc+3}]"
            a.e(f"v_mfma_f32_16x16x32_bf16 v[{acc}:{acc+3}], v[{wa}:{wa+3}], v[{OFR[c]}:{OFR[c]+3}], {cin}")
            if idx + 3 < 32:
                a.e(f"ds_read_b128 v[{wa}:{wa+3}], v4 offset:{(idx+3)*1024}")
            if c == 3 and T >= 1 and T < 7:
                pass
        if T >= 1:
            emit_store(T - 1)
    a.nop(8)
    emit_store(7)
    stamp("Wo stage done")

    P1 = a.newlabel("chain_poll1")
    if instr:
        a.e("s_mov_b32 s60, 0")
        a.e("s_mov_b32 s61, 0")
    a.label(P1)
    if instr:
        a.e("s_add_u32 s60, s60, 1")
    a.e("s_sub_u32 s29, s29, 1")
    a.e(f"s_cbranch_scc1 {BAIL}")
    for q in range(4):
        a.e(f"buffer_load_dwordx4 v[{72+4*q}:{75+4*q}], v8, s[8:11], 0 offen offset:{q*512} sc1")
    a.e("s_waitcnt vmcnt(0)")
    check_tags(a, 72, 16, 11, 124, 125, 126)
    a.e(f"s_cbranch_vccnz {P1}")
    stamp("poll1 ok")
    for r in range(4):
        a.e(f"v_add_f32 v{88+r}, v{72+r}, v{76+r}")
        a.e(f"v_add_f32 v{92+r}, v{80+r}, v{84+r}")
    for r in range(4):
        a.e(f"v_add_f32 v{88+r}, v{88+r}, v{92+r}")
    a.e("ds_write_b128 v9, v[88:91]")
    a.e("s_waitcnt lgkmcnt(0)")
    a.e("s_barrier")
    PM = a.newlabel("chain_pollm")
    a.e("s_cmp_lg_u32 s16, 0")
    a.e(f"s_cbranch_scc1 {PM}")
    for hg in range(8):
        a.e(f"ds_read_b128 v[{72+4*hg}:{75+4*hg}], v9 offset:{hg*512}")
    a.e("s_waitcnt lgkmcnt(0)")
    for r in range(4):
        a.e(f"v_add_f32 v{104+r}, v{72+r}, v{76+r}")
        a.e(f"v_add_f32 v{108+r}, v{80+r}, v{84+r}")
        a.e(f"v_add_f32 v{112+r}, v{88+r}, v{92+r}")
        a.e(f"v_add_f32 v{116+r}, v{96+r}, v{100+r}")
    for r in range(4):
        a.e(f"v_add_f32 v{104+r}, v{104+r}, v{108+r}")
        a.e(f"v_add_f32 v{112+r}, v{112+r}, v{116+r}")
    for r in range(4):
        a.e(f"v_add_f32 v{104+r}, v{104+r}, v{112+r}")
    a.e("v_cvt_pk_bf16_f32 v108, v104, v105")
    a.e("v_cvt_pk_bf16_f32 v109, v106, v107")
    a.e("s_mov_b32 s19, 0xffff0000")
    a.e("v_lshl_or_b32 v112, v108, 16, v11")
    a.e("v_and_or_b32 v113, v108, s19, v11")
    a.e("v_lshl_or_b32 v114, v109, 16, v11")
    a.e("v_and_or_b32 v115, v109, s19, v11")
    a.e("buffer_store_dwordx4 v[112:115], v10, s[8:11], 0 offen" + ("" if plain else " sc1"))
    a.label(PM)
    if instr:
        a.e("s_add_u32 s61, s61, 1")
    a.e("s_sub_u32 s29, s29, 1")
    a.e(f"s_cbranch_scc1 {BAIL}")
    for q in range(4):
        a.e(f"buffer_load_dwordx4 v[{72+4*q}:{75+4*q}], v6, s[8:11], 0 offen offset:{q*128} sc1")
    a.e("s_waitcnt vmcnt(0)")
    check_tags(a, 72, 16, 11, 124, 125, 126)
    a.e(f"s_cbranch_vccnz {PM}")
    stamp("pollM ok")
    for q in range(4):
        a.e(f"v_perm_b32 v{88+2*q}, v{73+4*q}, v{72+4*q}, s20")
        a.e(f"v_perm_b32 v{89+2*q}, v{75+4*q}, v{74+4*q}, s20")
    for q in range(4):
        a.e(f"ds_write_b64 v5, v[{88+2*q}:{89+2*q}] offset:{q*1024}")
    a.e("s_waitcnt lgkmcnt(0)")
    a.e("s_barrier")
    if instr:
        a.e("s_cmp_eq_u32 s17, 20")
        a.e(f"s_cselect_b32 s{40+nst[0]}, s60, s{40+nst[0]}")
        a.e(f"s_cselect_b32 s{41+nst[0]}, s61, s{41+nst[0]}")
        nst[0] += 2
    a.e("s_add_u32 s17, s17, 1")
    a.e(f"s_branch {STEP}")
    a.label(BAIL)
    a.label(END)
    if instr:
        SK = a.newlabel("chain_skipdump")
        a.e("s_lshl_b32 s19, s3, 2")
        a.e("s_add_u32 s19, s19, s16")
        a.e("s_lshl_b32 s19, s19, 7")
        a.e(f"s_add_u32 s19, s19, {WS_USED}")
        for i in range(nst[0]):
            a.e(f"v_mov_b32 v{32+i}, s{40+i}")
        a.e("v_mov_b32 v31, 0")
        for i in range(nst[0]):
            a.e(f"buffer_store_dword v{32+i}, v31, s[8:11], s19 offen offset:{4*i}")
    a.label(END0)
    a.e("s_endpgm")
    a.lines.append(kernel_desc(name, 512, 256))
```

```python
import math

KNAME = "interleave_layers__grouped_kv_mqa__memory_aug_recurrent_mem_tr__prompt"

ARG_AX, ARG_AWQ, ARG_AWK, ARG_AWV, ARG_AWO = 0, 8, 16, 24, 32
ARG_BX, ARG_MEM0, ARG_BWQ, ARG_BWK, ARG_BWV, ARG_BWO, ARG_SEG = 40, 48, 56, 64, 72, 80, 88
ARG_OUT, ARG_DBG, ARG_WS = 96, 104, 112
WS_BYTES = 268435456

MB = 1 << 20
FW   = 0
WOF  = 12 * MB
FA   = 16 * MB
FAO  = FA + 34 * 16 * 1024
XCH  = 18 * MB
XCH_SET = 1 * MB
INBOX_OFF = 0
MEMX_OFF = 512 * 1024
X1   = 20 * MB
X2   = 22 * MB
X3   = 24 * MB
XN   = 26 * MB
QA   = 28 * MB
OA   = 30 * MB
KFA  = 32 * MB
VFA  = 32 * MB + 64 * 1024
KX   = 48 * MB
VX   = 64 * MB
QX   = 80 * MB
KM   = 96 * MB
VM   = 104 * MB
OF   = 120 * MB
WS_USED = 136 * MB


class Asm:
    def __init__(self):
        self.lines = []
        self.uid = 0

    def e(self, s):
        self.lines.append("    " + s)

    def c(self, s):
        self.lines.append("    ; " + s)

    def label(self, l):
        self.lines.append(l + ":")

    def newlabel(self, base):
        self.uid += 1
        return f"L_{base}_{self.uid}"

    def nop(self, n):
        while n > 0:
            k = min(n, 16)
            self.e(f"s_nop {k-1}")
            n -= k

    def text(self):
        return "\n".join(self.lines) + "\n"


def f32bits(x):
    import struct
    return struct.unpack("<I", struct.pack("<f", x))[0]


def kernel_header(a, name):
    a.lines.append(".p2align 8")
    a.lines.append(f".globl {name}")
    a.lines.append(f".type {name},@function")
    a.label(name)


def kernel_desc(name, vgpr, accum, sgpr=102):
    return f""".section .rodata,"a"
.p2align 6
.amdhsa_kernel {name}
  .amdhsa_next_free_vgpr {vgpr}
  .amdhsa_next_free_sgpr {sgpr}
  .amdhsa_accum_offset {accum}
  .amdhsa_group_segment_fixed_size 0
  .amdhsa_kernarg_size 120
  .amdhsa_user_sgpr_count 2
  .amdhsa_user_sgpr_kernarg_segment_ptr 1
  .amdhsa_system_sgpr_workgroup_id_x 1
.end_amdhsa_kernel
.text
"""


def srd(a, d, base_lo, nbytes):
    a.e(f"s_mov_b32 s{d}, s{base_lo}")
    a.e(f"s_and_b32 s{d+1}, s{base_lo+1}, 0xffff")
    a.e(f"s_mov_b32 s{d+2}, {nbytes}")
    a.e(f"s_mov_b32 s{d+3}, 0x00020000")
```

```python
from common import *

N_FW = 384
N_WO = 128
N_AQ = 16
N_AO = 16
N_AKV = 8
N_Z = 16
G0 = 0
G1 = G0 + N_FW
G2 = G1 + N_WO
G3 = G2 + N_AQ
G4 = G3 + N_AO
G5 = G4 + N_AKV
GEND = G5 + N_Z


def emit_transpose_store(a, srd_dst, dst_voff, dst_soff):
    for cc in range(8):
        sel = "s20" if cc % 2 == 0 else "s21"
        d = 48 + 4 * (cc % 2)
        for p in range(4):
            a.e(f"v_perm_b32 v{d+p}, v{16+4*(2*p+1)+cc//2}, v{16+4*(2*p)+cc//2}, {sel}")
        a.e(f"buffer_store_dwordx4 v[{d}:{d+3}], v{dst_voff}, s[{srd_dst}:{srd_dst+3}], {dst_soff} offen offset:{cc*16}")
        a.nop(2)


def gen_prep(a, name):
    kernel_header(a, name)
    END = a.newlabel("prep_end")
    L_WO, L_AQ, L_AO, L_AKV, L_Z = [a.newlabel("prep_" + x) for x in ("wo", "aq", "ao", "akv", "z")]
    a.e(f"s_cmp_ge_u32 s2, {GEND}")
    a.e(f"s_cbranch_scc1 {END}")
    a.e(f"s_load_dwordx2 s[4:5], s[0:1], {ARG_WS}")
    a.e(f"s_load_dwordx4 s[24:27], s[0:1], {ARG_BWQ}")
    a.e(f"s_load_dwordx4 s[28:31], s[0:1], {ARG_BWV}")
    a.e(f"s_load_dwordx4 s[32:35], s[0:1], {ARG_AWQ}")
    a.e(f"s_load_dwordx4 s[36:39], s[0:1], {ARG_AWV}")
    a.e("v_and_b32 v1, 63, v0                 ; lane")
    a.e("v_lshrrev_b32 v2, 6, v0")
    a.nop(1)
    a.e("v_readfirstlane_b32 s16, v2          ; wave")
    a.e("s_mov_b32 s20, 0x05040100")
    a.e("s_mov_b32 s21, 0x07060302")
    a.e("v_lshrrev_b32 v2, 4, v1              ; g")
    a.e("v_and_b32 v3, 15, v1                 ; hf2")
    a.e("s_waitcnt lgkmcnt(0)")
    srd(a, 8, 4, WS_BYTES)
    srd(a, 40, 24, 512 * 4096 * 2)
    srd(a, 44, 26, 512 * 4096 * 2)
    srd(a, 48, 28, 512 * 4096 * 2)
    srd(a, 52, 30, 4096 * 512 * 2)
    srd(a, 56, 32, 512 * 512 * 2)
    srd(a, 60, 34, 512 * 16 * 2)
    srd(a, 64, 36, 512 * 16 * 2)
    srd(a, 68, 38, 512 * 512 * 2)
    a.e("s_lshl_b32 s3, s2, 2")
    a.e("s_add_u32 s3, s3, s16")
    a.e(f"s_cmp_ge_u32 s2, {G5}")
    a.e(f"s_cbranch_scc1 {L_Z}")
    a.e(f"s_cmp_ge_u32 s2, {G4}")
    a.e(f"s_cbranch_scc1 {L_AKV}")
    a.e(f"s_cmp_ge_u32 s2, {G3}")
    a.e(f"s_cbranch_scc1 {L_AO}")
    a.e(f"s_cmp_ge_u32 s2, {G2}")
    a.e(f"s_cbranch_scc1 {L_AQ}")
    a.e(f"s_cmp_ge_u32 s2, {G1}")
    a.e(f"s_cbranch_scc1 {L_WO}")

    a.e("s_lshr_b32 s4, s3, 9                 ; mat")
    a.e("s_bfe_u32 s5, s3, 0x40005            ; t = (unit>>5)&15")
    a.e("s_and_b32 s6, s3, 31                 ; cg")
    a.e("v_lshlrev_b32 v4, 16, v2             ; g*8*8192")
    a.e("v_lshl_add_u32 v4, v3, 4, v4")
    a.e("s_lshl_b32 s7, s5, 18                ; 32t*8192")
    a.e("s_lshl_b32 s19, s6, 8")
    a.e("s_add_u32 s7, s7, s19")
    a.e("v_add_u32 v4, s7, v4")
    a.e("s_cmp_eq_u32 s4, 0")
    for k in range(4):
        a.e(f"s_cselect_b32 s{12+k}, s{40+k}, s{44+k}")
    a.e("s_cmp_eq_u32 s4, 2")
    for k in range(4):
        a.e(f"s_cselect_b32 s{12+k}, s{48+k}, s{12+k}")
    for r in range(8):
        a.e(f"s_mov_b32 s19, {r*8192}")
        a.e(f"buffer_load_dwordx4 v[{16+4*r}:{19+4*r}], v4, s[12:15], s19 offen")
    a.e("v_lshrrev_b32 v5, 1, v3              ; hf2/2")
    a.e("v_lshlrev_b32 v5, 14, v5             ; *16*1024")
    a.e("v_lshl_add_u32 v5, v2, 8, v5         ; + g*256")
    a.e("v_and_b32 v6, 1, v3")
    a.e("v_lshl_add_u32 v5, v6, 7, v5")
    a.e("s_lshl_b32 s7, s4, 22                ; mat*4MB")
    a.e("s_lshl_b32 s19, s6, 17               ; 8cg*16KB")
    a.e("s_add_u32 s7, s7, s19")
    a.e("s_lshl_b32 s19, s5, 10")
    a.e("s_add_u32 s7, s7, s19")
    a.e(f"s_add_u32 s7, s7, {FW}")
    a.e("s_waitcnt vmcnt(0)")
    emit_transpose_store(a, 8, 5, "s7")
    a.e(f"s_branch {END}")

    a.label(L_WO)
    a.e(f"s_sub_u32 s3, s3, {G1*4}")
    a.e("s_lshr_b32 s4, s3, 4                 ; h")
    a.e("s_bfe_u32 s5, s3, 0x20002            ; c")
    a.e("s_and_b32 s6, s3, 3                  ; cg")
    a.e("v_lshlrev_b32 v4, 12, v2             ; 4g*1024")
    a.e("v_lshl_add_u32 v4, v3, 4, v4")
    a.e("s_lshl_b32 s7, s4, 17                ; h*128*1024")
    a.e("s_lshl_b32 s19, s5, 15               ; 32c*1024")
    a.e("s_add_u32 s7, s7, s19")
    a.e("s_lshl_b32 s19, s6, 8")
    a.e("s_add_u32 s7, s7, s19")
    a.e("v_add_u32 v4, s7, v4")
    for r in range(8):
        row = r if r < 4 else 16 + r - 4
        a.e(f"s_mov_b32 s19, {row*1024}")
        a.e(f"buffer_load_dwordx4 v[{16+4*r}:{19+4*r}], v4, s[52:55], s19 offen")
    a.e("v_lshrrev_b32 v5, 1, v3")
    a.e("v_lshlrev_b32 v5, 12, v5             ; (hf2/2)*4096")
    a.e("v_lshl_add_u32 v5, v2, 8, v5")
    a.e("v_and_b32 v6, 1, v3")
    a.e("v_lshl_add_u32 v5, v6, 7, v5")
    a.e("s_lshl_b32 s7, s4, 17                ; h*32*4096")
    a.e("s_lshl_b32 s19, s6, 15               ; 8cg*4096")
    a.e("s_add_u32 s7, s7, s19")
    a.e("s_lshl_b32 s19, s5, 10")
    a.e("s_add_u32 s7, s7, s19")
    a.e(f"s_add_u32 s7, s7, {WOF}")
    a.e("s_waitcnt vmcnt(0)")
    emit_transpose_store(a, 8, 5, "s7")
    a.e(f"s_branch {END}")

    for (lab, g0, srd_src, dst) in ((L_AQ, G2, 56, FA), (L_AO, G3, 68, FAO)):
        a.label(lab)
        a.e(f"s_sub_u32 s3, s3, {g0*4}")
        a.e("s_lshr_b32 s5, s3, 2                 ; t")
        a.e("s_and_b32 s6, s3, 3                  ; cg")
        a.e("v_lshlrev_b32 v4, 13, v2             ; 8g*1024")
        a.e("v_lshl_add_u32 v4, v3, 4, v4")
        a.e("s_lshl_b32 s7, s5, 15                ; 32t*1024")
        a.e("s_lshl_b32 s19, s6, 8")
        a.e("s_add_u32 s7, s7, s19")
        a.e("v_add_u32 v4, s7, v4")
        for r in range(8):
            a.e(f"s_mov_b32 s19, {r*1024}")
            a.e(f"buffer_load_dwordx4 v[{16+4*r}:{19+4*r}], v4, s[{srd_src}:{srd_src+3}], s19 offen")
        a.e("v_lshrrev_b32 v5, 1, v3")
        a.e("v_lshlrev_b32 v5, 14, v5")
        a.e("v_lshl_add_u32 v5, v2, 8, v5")
        a.e("v_and_b32 v6, 1, v3")
        a.e("v_lshl_add_u32 v5, v6, 7, v5")
        a.e("s_lshl_b32 s7, s6, 17                ; 8cg*16KB")
        a.e("s_lshl_b32 s19, s5, 10")
        a.e("s_add_u32 s7, s7, s19")
        a.e(f"s_add_u32 s7, s7, {dst}")
        a.e("s_waitcnt vmcnt(0)")
        emit_transpose_store(a, 8, 5, "s7")
        a.e(f"s_branch {END}")

    a.label(L_AKV)
    a.e(f"s_sub_u32 s3, s3, {G4*4}")
    a.e("s_lshr_b32 s4, s3, 4")
    a.e("s_and_b32 s5, s3, 15                 ; t")
    a.e("s_cmp_eq_u32 s4, 0")
    for k in range(4):
        a.e(f"s_cselect_b32 s{12+k}, s{60+k}, s{64+k}")
    a.e("v_lshlrev_b32 v4, 8, v2              ; 8g*32")
    a.e("v_lshl_add_u32 v4, v3, 4, v4")
    a.e("s_lshl_b32 s7, s5, 10                ; 32t*32")
    a.e("v_add_u32 v4, s7, v4")
    a.e(f"v_mov_b32 v7, 0x40000000")
    a.e("v_cmp_gt_u32 vcc, 2, v3")
    a.nop(2)
    a.e("v_cndmask_b32 v4, v7, v4, vcc")
    for r in range(8):
        a.e(f"s_mov_b32 s19, {r*32}")
        a.e(f"buffer_load_dwordx4 v[{16+4*r}:{19+4*r}], v4, s[12:15], s19 offen")
    a.e("v_lshlrev_b32 v5, 8, v2")
    a.e("v_lshl_add_u32 v5, v3, 7, v5")
    a.e("v_cndmask_b32 v5, v7, v5, vcc")
    a.e("s_lshl_b32 s7, s4, 14")
    a.e("s_lshl_b32 s19, s5, 10")
    a.e("s_add_u32 s7, s7, s19")
    a.e(f"s_add_u32 s7, s7, {FA + 32*16*1024}")
    a.e("s_waitcnt vmcnt(0)")
    emit_transpose_store(a, 8, 5, "s7")
    a.e(f"s_branch {END}")

    a.label(L_Z)
    a.e(f"s_sub_u32 s3, s2, {G5}")
    a.e("s_lshr_b32 s4, s3, 3")
    a.e("s_and_b32 s5, s3, 7")
    a.e(f"s_mul_i32 s5, s5, {72*1024}")
    a.e("s_lshl_b32 s4, s4, 20")
    a.e("s_add_u32 s7, s4, s5")
    a.e(f"s_add_u32 s7, s7, {XCH}")
    a.e("v_lshlrev_b32 v4, 4, v0")
    for k in range(4):
        a.e(f"v_mov_b32 v{8+k}, 0")
    for k in range(19):
        a.e(f"s_add_u32 s19, s7, {k*4096}")
        a.e(f"buffer_store_dwordx4 v[8:11], v4, s[8:11], s19 offen")
    a.label(END)
    a.e("s_endpgm")
    a.lines.append(kernel_desc(name, 64, 64))
```

```python
import sys, os
sys.path.insert(0, os.path.dirname(__file__))
from common import *
import chain, prep, alayer, blayer

HEADER = open('cdna_kernels/%s.s.ref' % KNAME).read().split('; Override launch geometry')[0]

def build(launches, bodies):
    out = [HEADER]
    for (k, g, b, lds) in launches:
        out.append(f"; @launch kernel={k} grid=({g[0]},{g[1]},{g[2]}) block=({b[0]},{b[1]},{b[2]}) lds={lds}\n")
    out.append('.amdgcn_target "amdgcn-amd-amdhsa--gfx950"\n.text\n')
    out.append(bodies)
    return "".join(out)

def all_kernels(opts):
    a = Asm()
    sp = 1 if "--spread" in opts else 8
    pl = "--plain" in opts
    prep.gen_prep(a, "prep_kernel")
    alayer.gen_ka1(a, "ka1_0_kernel", 0)
    alayer.gen_ka1(a, "ka1_1_kernel", 1)
    alayer.gen_ka2(a, "ka2_kernel")
    alayer.gen_ka3(a, "ka3_0_kernel", 0)
    alayer.gen_ka3(a, "ka3_1_kernel", 1)
    blayer.gen_kb1(a, "kb1_kernel")
    chain.gen_chain(a, "chain0_kernel", 0, instr=("--instr" in opts), spread=sp, plain=pl)
    chain.gen_chain(a, "chain1_kernel", 1, spread=sp, plain=pl)
    blayer.gen_kb3(a, "kb3_kernel")
    blayer.gen_kb4(a, "kb4_0_kernel", 0)
    blayer.gen_kb4(a, "kb4_1_kernel", 1)
    return a

def launch_list():
    L = [("prep_kernel", (prep.GEND,1,1), (256,1,1), 0)]
    for l in range(2):
        L += [(f"ka1_{l}_kernel", (128,1,1), (256,1,1), 16640),
              ("ka2_kernel", (256,1,1), (512,1,1), alayer.KA2_LDS),
              (f"ka3_{l}_kernel", (128,1,1), (256,1,1), 16640),
              ("kb1_kernel", (256,1,1), (256,1,1), blayer.KB1_LDS),
              (f"chain{l}_kernel", (256,1,1), (256,1,1), chain.LDS_BYTES),
              ("kb3_kernel", (512,1,1), (256,1,1), 0),
              (f"kb4_{l}_kernel", (256,1,1), (256,1,1), 0)]
    return L

if __name__ == "__main__":
    opts = [x for x in sys.argv[1:] if x.startswith('--')]
    args = [x for x in sys.argv[1:] if not x.startswith('--')]
    a = all_kernels(opts)
    s = build(launch_list(), a.text())
    dst = args[0] if args else 'test.s'
    open(dst, 'w').write(s)
    print("wrote", dst, len(s), "bytes")
```

```python
from common import *
from alayer import RS

KB1_LDS = 128 * RS
SCALE_LOG2E_B = (128.0 ** -0.5) * math.log2(math.e)


def gen_kb1(a, name, layer=0, mega=False):
    LO = layer * LAYER_OFF if mega else 0
    XSET = XCH + layer * XCH_SET
    SC = " sc1" if mega else ""
    END = a.newlabel("kb1_end")
    if not mega:
        kernel_header(a, name)
        a.e("s_cmp_ge_u32 s2, 256")
        a.e(f"s_cbranch_scc1 {END}")
        a.e("s_mov_b32 s27, s2")
    a.e(f"s_load_dwordx2 s[4:5], s[0:1], {ARG_WS}")
    a.e("v_and_b32 v1, 63, v0                 ; lane")
    a.e("v_lshrrev_b32 v2, 6, v0")
    a.nop(1)
    a.e("v_readfirstlane_b32 s16, v2          ; wave")
    a.e("v_lshrrev_b32 v2, 4, v1              ; g")
    a.e("v_and_b32 v3, 15, v1                 ; l16")
    a.e("s_lshr_b32 s3, s27, 4")
    a.e("s_and_b32 s26, s27, 15               ; part")
    a.e("s_waitcnt lgkmcnt(0)")
    srd(a, 8, 4, WS_BYTES)
    a.e("v_lshlrev_b32 v7, 4, v1              ; lane*16")
    a.e("s_lshl_b32 s5, s3, 17                ; 128b*1024")
    a.e("s_lshl_b32 s19, s16, 10")
    a.e("s_add_u32 s5, s5, s19")
    a.e(f"s_add_u32 s5, s5, {XN}")
    a.e(f"s_mul_i32 s19, s16, {RS}")
    a.e("v_add_u32 v4, s19, v7")
    a.e(f"v_add_u32 v5, {16*4*RS}, v4")
    for blk in range(4):
        for k in range(8):
            a.e(f"s_add_u32 s19, s5, {(blk*8+k)*4096}")
            a.e(f"buffer_load_dwordx4 v[{16+4*k}:{19+4*k}], v7, s[8:11], s19 offen")
        for k in range(8):
            kk = blk * 8 + k
            a.e(f"s_waitcnt vmcnt({7-k})")
            if kk < 16:
                a.e(f"ds_write_b128 v4, v[{16+4*k}:{19+4*k}] offset:{kk*4*RS}")
            else:
                a.e(f"ds_write_b128 v5, v[{16+4*k}:{19+4*k}] offset:{(kk-16)*4*RS}")
    a.e(f"v_mul_u32_u24 v8, {RS}, v3")
    a.e("v_lshl_add_u32 v8, v2, 4, v8")
    a.e(f"v_add_u32 v9, {4*16*RS}, v8")
    a.e("s_waitcnt lgkmcnt(0)")
    a.e("s_barrier")
    ACC = 16
    XB = [80, 112]
    WB = [144, 152]

    def acc(t2, u):
        return ACC + (t2 * 8 + u) * 4

    def load_x(t, buf):
        for u in range(8):
            base = "v8" if u < 4 else "v9"
            a.e(f"ds_read_b128 v[{buf+4*u}:{buf+4*u+3}], {base} offset:{(u%4)*16*RS + t*64}")

    for hh in range(2):
        for mat in range(3):
            a.e(f"s_lshl_b32 s6, s26, 1")
            a.e(f"s_add_u32 s6, s6, {hh}                 ; h")
            a.e("s_lshl_b32 s22, s6, 17")
            a.e("s_lshl_b32 s19, s16, 15")
            a.e("s_add_u32 s22, s22, s19")
            a.e(f"s_add_u32 s22, s22, {FW + mat*4*MB}")

            def load_w(t, buf):
                for t2 in range(2):
                    a.e(f"s_add_u32 s19, s22, {t2*16384 + t*1024}")
                    a.e(f"buffer_load_dwordx4 v[{buf+4*t2}:{buf+4*t2+3}], v7, s[8:11], s19 offen")

            load_w(0, WB[0])
            load_x(0, XB[0])
            for t in range(16):
                if t + 1 < 16:
                    load_w(t + 1, WB[(t + 1) % 2])
                    load_x(t + 1, XB[(t + 1) % 2])
                    a.e("s_waitcnt vmcnt(2) lgkmcnt(8)")
                else:
                    a.e("s_waitcnt vmcnt(0) lgkmcnt(0)")
                wb, xb = WB[t % 2], XB[t % 2]
                for u in range(8):
                    for t2 in range(2):
                        d = acc(t2, u)
                        cin = "0" if t == 0 else f"v[{d}:{d+3}]"
                        if mat < 2:
                            a.e(f"v_mfma_f32_16x16x32_bf16 v[{d}:{d+3}], v[{wb+4*t2}:{wb+4*t2+3}], v[{xb+4*u}:{xb+4*u+3}], {cin}")
                        else:
                            a.e(f"v_mfma_f32_16x16x32_bf16 v[{d}:{d+3}], v[{xb+4*u}:{xb+4*u+3}], v[{wb+4*t2}:{wb+4*t2+3}], {cin}")
            a.nop(8)
            a.e("s_lshl_b32 s23, s3, 2                ; 4b")
            a.e("s_lshl_b32 s23, s23, 5")
            a.e("s_add_u32 s23, s23, s6               ; (4b)*32 + h")
            a.e("s_lshl_b32 s23, s23, 13")
            a.e("s_lshl_b32 s19, s16, 11")
            a.e("s_add_u32 s23, s23, s19")
            dst = [QX, KX, VX][mat] + LO
            a.e(f"s_add_u32 s23, s23, {dst}")
            if mat < 2:
                for u in range(8):
                    a0, a1 = acc(0, u), acc(1, u)
                    d = 80 + 4 * (u % 2)
                    a.e(f"v_cvt_pk_bf16_f32 v{d}, v{a0}, v{a0+1}")
                    a.e(f"v_cvt_pk_bf16_f32 v{d+1}, v{a0+2}, v{a0+3}")
                    a.e(f"v_cvt_pk_bf16_f32 v{d+2}, v{a1}, v{a1+1}")
                    a.e(f"v_cvt_pk_bf16_f32 v{d+3}, v{a1+2}, v{a1+3}")
                    a.e(f"s_add_u32 s19, s23, {(u//2)*32*8192 + (u%2)*1024}")
                    a.e(f"buffer_store_dwordx4 v[{d}:{d+3}], v7, s[8:11], s19 offen" + SC)
                    a.nop(2)
            else:
                for sp in range(4):
                    for t2 in range(2):
                        A_, B_ = acc(t2, 2 * sp), acc(t2, 2 * sp + 1)
                        d = 80 + 4 * t2
                        a.e(f"v_cvt_pk_bf16_f32 v{d}, v{A_}, v{A_+1}")
                        a.e(f"v_cvt_pk_bf16_f32 v{d+1}, v{A_+2}, v{A_+3}")
                        a.e(f"v_cvt_pk_bf16_f32 v{d+2}, v{B_}, v{B_+1}")
                        a.e(f"v_cvt_pk_bf16_f32 v{d+3}, v{B_+2}, v{B_+3}")
                        a.e(f"s_add_u32 s19, s23, {sp*32*8192 + t2*1024}")
                        a.e(f"buffer_store_dwordx4 v[{d}:{d+3}], v7, s[8:11], s19 offen" + SC)
                        a.nop(2)
    if mega:
        a.e("s_waitcnt vmcnt(0)")
        a.e("s_barrier")
        a.e("s_lshl_b32 s19, s27, 2")
        a.e(f"s_add_u32 s19, s19, {XSET + T1F_OFF}")
        a.e("v_mov_b32 v80, 1")
        a.e("v_mov_b32 v81, 0")
        a.e("v_cmp_eq_u32 vcc, 0, v0")
        a.e("s_and_saveexec_b64 s[30:31], vcc")
        a.e("buffer_store_dword v80, v81, s[8:11], s19 offen sc1")
        a.e("s_mov_b64 exec, s[30:31]")
        a.label(END)
        return
    a.label(END)
    a.e("s_endpgm")
    a.lines.append(kernel_desc(name, 160, 160))


def rowred(a, op, x, t):
    for swap in ("v_permlane16_swap_b32", "v_permlane32_swap_b32"):
        a.e(f"v_mov_b32 v{t}, v{x}")
        a.nop(2)
        a.e(f"{swap} v{x}, v{t}")
        a.nop(1)
        a.e(f"{op} v{x}, v{x}, v{t}")


def gen_kb3(a, name, layer=0):
    LO = layer * LAYER_OFF
    kernel_header(a, name)
    END = a.newlabel("kb3_end")
    a.e("s_cmp_ge_u32 s2, 512")
    a.e(f"s_cbranch_scc1 {END}")
    a.e(f"s_load_dwordx2 s[4:5], s[0:1], {ARG_WS}")
    a.e("v_and_b32 v1, 63, v0                 ; lane")
    a.e("v_lshrrev_b32 v2, 6, v0")
    a.nop(1)
    a.e("v_readfirstlane_b32 s16, v2          ; wave")
    a.e("v_lshrrev_b32 v2, 4, v1              ; g")
    a.e("v_and_b32 v3, 15, v1                 ; l16")
    a.e("s_lshl_b32 s3, s2, 2")
    a.e("s_add_u32 s3, s3, s16                ; task = s*32 + h")
    a.e("s_waitcnt lgkmcnt(0)")
    srd(a, 8, 4, WS_BYTES)
    a.e("v_lshlrev_b32 v7, 4, v1              ; lane*16")
    a.e("s_lshl_b32 s6, s3, 13                ; task*8192")
    a.e("s_lshl_b32 s7, s3, 12                ; task*4096")
    a.e(f"s_add_u32 s19, s6, {QX + LO}")
    a.e(f"s_add_u32 s22, s19, 4096")
    for i in range(8):
        sreg = "s19" if i < 4 else "s22"
        a.e(f"buffer_load_dwordx4 v[{16+4*i}:{19+4*i}], v7, s[8:11], {sreg} offen offset:{(i%4)*1024}")
    a.e(f"s_add_u32 s19, s6, {KX + LO}")
    a.e(f"s_add_u32 s22, s19, 4096")
    for i in range(8):
        sreg = "s19" if i < 4 else "s22"
        a.e(f"buffer_load_dwordx4 v[{48+4*i}:{51+4*i}], v7, s[8:11], {sreg} offen offset:{(i%4)*1024}")
    a.e(f"s_add_u32 s19, s7, {KM + LO}")
    for i in range(4):
        a.e(f"buffer_load_dwordx4 v[{80+4*i}:{83+4*i}], v7, s[8:11], s19 offen offset:{i*1024}")
    a.e(f"s_add_u32 s19, s6, {VX + LO}")
    a.e(f"s_add_u32 s22, s19, 4096")
    for i in range(8):
        sreg = "s19" if i < 4 else "s22"
        a.e(f"buffer_load_dwordx4 v[{96+4*i}:{99+4*i}], v7, s[8:11], {sreg} offen offset:{(i%4)*1024}")
    a.e(f"s_add_u32 s19, s6, {VM + LO}")
    a.e(f"s_add_u32 s22, s19, 4096")
    for i in range(8):
        sreg = "s19" if i < 4 else "s22"
        a.e(f"buffer_load_dwordx4 v[{128+4*i}:{131+4*i}], v7, s[8:11], {sreg} offen offset:{(i%4)*1024}")
    a.e("v_mov_b32 v10, 0xf149f2ca            ; -1e30")
    a.e("v_cmp_le_u32 vcc, 2, v2")
    a.nop(2)
    a.e("v_cndmask_b32 v160, 0, v10, vcc")
    for r in (161, 162, 163):
        a.e(f"v_mov_b32 v{r}, v160")
    a.e("v_lshlrev_b32 v11, 2, v2             ; 4g")
    for r in range(4):
        a.e(f"v_add_u32 v12, {r}, v11")
        a.e("v_cmp_gt_u32 vcc, v12, v3")
        a.nop(2)
        a.e(f"v_cndmask_b32 v{164+r}, 0, v10, vcc")
    a.e(f"s_mov_b32 s21, 0x{f32bits(SCALE_LOG2E_B):08x}")
    a.e("s_waitcnt vmcnt(0)")
    def S(uq, tile):
        return 168 + (uq * 3 + tile) * 4

    for uq in range(2):
        for c in range(4):
            q = 16 + (c * 2 + uq) * 4
            d = S(uq, 0)
            cin = "v[160:163]" if c == 0 else f"v[{d}:{d+3}]"
            a.e(f"v_mfma_f32_16x16x32_bf16 v[{d}:{d+3}], v[{80+4*c}:{83+4*c}], v[{q}:{q+3}], {cin}")
            d = S(uq, 1)
            cin = ("v[164:167]" if uq == 0 else "0") if c == 0 else f"v[{d}:{d+3}]"
            k0 = 48 + (c * 2 + 0) * 4
            a.e(f"v_mfma_f32_16x16x32_bf16 v[{d}:{d+3}], v[{k0}:{k0+3}], v[{q}:{q+3}], {cin}")
            if uq == 1:
                d = S(uq, 2)
                cin = "v[164:167]" if c == 0 else f"v[{d}:{d+3}]"
                k1 = 48 + (c * 2 + 1) * 4
                a.e(f"v_mfma_f32_16x16x32_bf16 v[{d}:{d+3}], v[{k1}:{k1+3}], v[{q}:{q+3}], {cin}")
    a.nop(8)
    for uq in range(2):
        nreg = 8 if uq == 0 else 12
        b0 = S(uq, 0)
        a.e(f"v_max3_f32 v4, v{b0}, v{b0+1}, v{b0+2}")
        i = 3
        while i + 1 < nreg:
            a.e(f"v_max3_f32 v4, v4, v{b0+i}, v{b0+i+1}")
            i += 2
        if i < nreg:
            a.e(f"v_max_f32 v4, v4, v{b0+i}")
        rowred(a, "v_max_f32", 4, 5)
        a.e("v_mul_f32 v4, s21, v4")
        for i in range(nreg):
            a.e(f"v_fma_f32 v{b0+i}, v{b0+i}, s21, -v4")
        for i in range(nreg):
            a.e(f"v_exp_f32 v{b0+i}, v{b0+i}")
        a.nop(1)
        a.e(f"v_add_f32 v5, v{b0}, v{b0+1}")
        for i in range(2, nreg):
            a.e(f"v_add_f32 v5, v5, v{b0+i}")
        rowred(a, "v_add_f32", 5, 6)
        a.e("v_rcp_f32 v5, v5")
        a.nop(1)
        for i in range(nreg):
            a.e(f"v_mul_f32 v{b0+i}, v5, v{b0+i}")
        pm, px = 192 + 8 * uq, 196 + 8 * uq
        a.e(f"v_cvt_pk_bf16_f32 v{pm}, v{b0}, v{b0+1}")
        a.e(f"v_cvt_pk_bf16_f32 v{pm+1}, v{b0+2}, v{b0+3}")
        a.e(f"v_mov_b32 v{pm+2}, 0")
        a.e(f"v_mov_b32 v{pm+3}, 0")
        a.e(f"v_cvt_pk_bf16_f32 v{px}, v{b0+4}, v{b0+5}")
        a.e(f"v_cvt_pk_bf16_f32 v{px+1}, v{b0+6}, v{b0+7}")
        if uq == 1:
            a.e(f"v_cvt_pk_bf16_f32 v{px+2}, v{b0+8}, v{b0+9}")
            a.e(f"v_cvt_pk_bf16_f32 v{px+3}, v{b0+10}, v{b0+11}")
        else:
            a.e(f"v_mov_b32 v{px+2}, 0")
            a.e(f"v_mov_b32 v{px+3}, 0")
    a.nop(2)
    def O(w, t2, uq):
        return 16 + ((w * 2 + t2) * 2 + uq) * 4
    for w in range(4):
        for t2 in range(2):
            vx = 96 + (w * 2 + t2) * 4
            vm = 128 + (w * 2 + t2) * 4
            for uq in range(2):
                d = O(w, t2, uq)
                pm, px = 192 + 8 * uq, 196 + 8 * uq
                a.e(f"v_mfma_f32_16x16x32_bf16 v[{d}:{d+3}], v[{vx}:{vx+3}], v[{px}:{px+3}], 0")
                a.e(f"v_mfma_f32_16x16x32_bf16 v[{d}:{d+3}], v[{vm}:{vm+3}], v[{pm}:{pm+3}], v[{d}:{d+3}]")
    a.nop(8)
    a.e(f"s_add_u32 s19, s6, {OF + LO}")
    a.e(f"s_add_u32 s22, s19, 4096")
    for w in range(4):
        for uq in range(2):
            a0, a1 = O(w, 0, uq), O(w, 1, uq)
            d = 208 + 4 * uq
            a.e(f"v_cvt_pk_bf16_f32 v{d}, v{a0}, v{a0+1}")
            a.e(f"v_cvt_pk_bf16_f32 v{d+1}, v{a0+2}, v{a0+3}")
            a.e(f"v_cvt_pk_bf16_f32 v{d+2}, v{a1}, v{a1+1}")
            a.e(f"v_cvt_pk_bf16_f32 v{d+3}, v{a1+2}, v{a1+3}")
            i = w * 2 + uq
            sreg = "s19" if i < 4 else "s22"
            a.e(f"buffer_store_dwordx4 v[{d}:{d+3}], v7, s[8:11], {sreg} offen offset:{(i%4)*1024}")
            a.nop(2)
    a.label(END)
    a.e("s_endpgm")
    a.lines.append(kernel_desc(name, 216, 216))


def gen_kb4(a, name, layer):
    kernel_header(a, name)
    END = a.newlabel("kb4_end")
    a.e("s_cmp_ge_u32 s2, 256")
    a.e(f"s_cbranch_scc1 {END}")
    a.e(f"s_load_dwordx2 s[4:5], s[0:1], {ARG_WS}")
    a.e(f"s_load_dwordx2 s[6:7], s[0:1], {ARG_OUT}")
    a.e("v_and_b32 v1, 63, v0                 ; lane")
    a.e("v_lshrrev_b32 v2, 6, v0")
    a.nop(1)
    a.e("v_readfirstlane_b32 s16, v2          ; wave")
    a.e("v_lshrrev_b32 v2, 4, v1              ; g")
    a.e("v_and_b32 v3, 15, v1                 ; l16")
    a.e("s_lshr_b32 s3, s2, 3")
    a.e("s_and_b32 s26, s2, 7")
    a.e("s_waitcnt lgkmcnt(0)")
    srd(a, 8, 4, WS_BYTES)
    srd(a, 12, 6, 2048 * 512 * 2)
    a.e("v_lshlrev_b32 v7, 4, v1              ; lane*16")
    a.e("s_lshl_b32 s5, s26, 2")
    a.e("s_add_u32 s5, s5, s16                ; CT")
    a.e("s_lshl_b32 s5, s5, 12")
    a.e(f"s_add_u32 s5, s5, {WOF}              ; + h*131072 + c*1024")
    a.e("s_lshl_b32 s17, s3, 19               ; 2tg*32*8192")
    a.e(f"s_add_u32 s17, s17, {OF + layer * LAYER_OFF}")
    ACC = 16
    NB = 3
    WBUF = [32 + 4 * i for i in range(NB)]
    OBUF = [48 + 16 * i for i in range(NB)]

    def load(k, buf):
        h, c = k // 4, k % 4
        a.e(f"s_add_u32 s19, s5, {h*131072 + c*1024}")
        a.e(f"buffer_load_dwordx4 v[{WBUF[buf]}:{WBUF[buf]+3}], v7, s[8:11], s19 offen")
        for tt in range(4):
            seg, u = tt // 2, tt % 2
            a.e(f"s_add_u32 s19, s17, {seg*32*8192 + h*8192 + c*2048 + u*1024}")
            a.e(f"buffer_load_dwordx4 v[{OBUF[buf]+4*tt}:{OBUF[buf]+4*tt+3}], v7, s[8:11], s19 offen")

    NK = 128
    for k in range(NB - 1):
        load(k, k)
    for k in range(NK):
        if k + NB - 1 < NK:
            load(k + NB - 1, (k + NB - 1) % NB)
            a.e(f"s_waitcnt vmcnt({5*(NB-1)})")
        else:
            a.e(f"s_waitcnt vmcnt({5*(NK-1-k)})")
        b = k % NB
        for tt in range(4):
            d = ACC + 4 * tt
            cin = "0" if k == 0 else f"v[{d}:{d+3}]"
            a.e(f"v_mfma_f32_16x16x32_bf16 v[{d}:{d+3}], v[{WBUF[b]}:{WBUF[b]+3}], v[{OBUF[b]+4*tt}:{OBUF[b]+4*tt+3}], {cin}")
    a.e("s_lshl_b32 s5, s26, 2")
    a.e("s_add_u32 s5, s5, s16")
    a.e("s_lshl_b32 s5, s5, 5                 ; 16CT*2")
    a.e("s_lshl_b32 s19, s3, 16               ; 64tg*1024")
    a.e("s_add_u32 s5, s5, s19")
    a.e("v_lshlrev_b32 v8, 10, v3")
    a.e("v_lshl_add_u32 v8, v2, 3, v8")
    xsrc = X1 if layer == 0 else X3
    a.e(f"s_add_u32 s18, s5, {xsrc}")
    for tt in range(4):
        a.e(f"s_add_u32 s19, s18, {tt*16384}")
        a.e(f"buffer_load_dwordx2 v[{32+2*tt}:{33+2*tt}], v8, s[8:11], s19 offen")
    a.e("s_waitcnt vmcnt(0)")
    for tt in range(4):
        d = ACC + 4 * tt
        x0, x1 = 32 + 2 * tt, 33 + 2 * tt
        a.e(f"v_cvt_pk_bf16_f32 v{d}, v{d}, v{d+1}")
        a.e(f"v_cvt_pk_bf16_f32 v{d+2}, v{d+2}, v{d+3}")
        a.e(f"v_lshlrev_b32 v100, 16, v{d}")
        a.e(f"v_and_b32 v101, 0xffff0000, v{d}")
        a.e(f"v_lshlrev_b32 v102, 16, v{d+2}")
        a.e(f"v_and_b32 v103, 0xffff0000, v{d+2}")
        a.e(f"v_lshlrev_b32 v104, 16, v{x0}")
        a.e(f"v_and_b32 v105, 0xffff0000, v{x0}")
        a.e(f"v_lshlrev_b32 v106, 16, v{x1}")
        a.e(f"v_and_b32 v107, 0xffff0000, v{x1}")
        a.e("v_add_f32 v100, v100, v104")
        a.e("v_add_f32 v101, v101, v105")
        a.e("v_add_f32 v102, v102, v106")
        a.e("v_add_f32 v103, v103, v107")
        a.e(f"v_cvt_pk_bf16_f32 v{d}, v100, v101")
        a.e(f"v_cvt_pk_bf16_f32 v{d+1}, v102, v103")
        if layer == 0:
            a.e(f"s_add_u32 s19, s5, {X2 + tt*16384}")
            a.e(f"buffer_store_dwordx2 v[{d}:{d+1}], v8, s[8:11], s19 offen")
        else:
            a.e(f"s_add_u32 s19, s5, {tt*16384}")
            a.e(f"buffer_store_dwordx2 v[{d}:{d+1}], v8, s[12:15], s19 offen")
    a.label(END)
    a.e("s_endpgm")
    a.lines.append(kernel_desc(name, 112, 112))
```

```python
from common import *

L_WO = 0
L_MF = 131072
L_XQ = 147456
L_RED = L_XQ
LDS_BYTES = L_XQ + 3 * 4096

XCC_OFF = 528 * 1024
OOB = 0x40000000

SCALE_LOG2E = (128.0 ** -0.5) * math.log2(math.e)


def check_tags(a, R, n, vtag, t0, t1, t2):
    a.e(f"v_xor_b32 v{t0}, v{R}, v{vtag}")
    a.e(f"v_xor_b32 v{t1}, v{R+1}, v{vtag}")
    a.e(f"v_xor_b32 v{t2}, v{R+2}, v{vtag}")
    a.e(f"v_or3_b32 v{t0}, v{t0}, v{t1}, v{t2}")
    i = 3
    while i + 1 < n:
        a.e(f"v_xor_b32 v{t1}, v{R+i}, v{vtag}")
        a.e(f"v_xor_b32 v{t2}, v{R+i+1}, v{vtag}")
        a.e(f"v_or3_b32 v{t0}, v{t0}, v{t1}, v{t2}")
        i += 2
    if i < n:
        a.e(f"v_xor_b32 v{t1}, v{R+i}, v{vtag}")
        a.e(f"v_or_b32 v{t0}, v{t0}, v{t1}")
    a.e(f"v_and_b32 v{t0}, 3, v{t0}")
    a.e(f"v_cmp_ne_u32 vcc, 0, v{t0}")


def rowmax_or_sum(a, op, x, t):
    for swap in ("v_permlane16_swap_b32", "v_permlane32_swap_b32"):
        a.e(f"v_mov_b32 v{t}, v{x}")
        a.nop(2)
        a.e(f"{swap} v{x}, v{t}")
        a.nop(1)
        a.e(f"{op} v{x}, v{x}, v{t}")


class LdsTrack:
    def __init__(self, a):
        self.a = a
        self.q = []
        self.done = 0
    def issue(self, tag, ins):
        self.a.e(ins)
        self.q.append(tag)
    def wait(self, tag):
        idx = self.q.index(tag)
        if idx < self.done:
            return
        n_after = len(self.q) - 1 - idx
        assert n_after <= 15
        self.a.e(f"s_waitcnt lgkmcnt({n_after})")
        self.done = idx + 1
    def drain(self):
        self.a.e("s_waitcnt lgkmcnt(0)")
        self.done = len(self.q)


STAMPS = []
def gen_chain(a, name, layer, pollbudget=1 << 22, instr=False, spread=8, plain=False, force_slow=False, sleepm=0, mega=False):
    nst = [0]
    def stamp(tag):
        if not instr:
            return
        i = nst[0]; nst[0] += 1
        STAMPS.append(tag)
        a.e("s_memtime s[30:31]")
        a.e("s_waitcnt lgkmcnt(0)")
        a.e("s_cmp_eq_u32 s17, 20")
        a.e(f"s_cselect_b32 s{40+i}, s30, s{40+i}")
    XSET = XCH + layer * XCH_SET
    LO = layer * LAYER_OFF if mega else 0
    KX_, VX_, KM_, VM_ = KX + LO, VX + LO, KM + LO, VM + LO
    SC = " sc1" if mega else ""
    INBOX = XSET + INBOX_OFF
    MEMX = XSET + MEMX_OFF
    END = a.newlabel("chain_end")
    END0 = a.newlabel("chain_exit")
    BAIL = a.newlabel("chain_bail")


    def wait_t1(seg_sreg):
        if not mega:
            return
        SKW = a.newlabel("chain_t1skip"); LW = a.newlabel("chain_t1wait")
        a.e(f"s_and_b32 s25, {seg_sreg}, 3")
        a.e("s_cmp_lg_u32 s25, 0")
        a.e(f"s_cbranch_scc1 {SKW}")
        a.e(f"s_lshr_b32 s25, {seg_sreg}, 2")
        a.e("s_lshl_b32 s25, s25, 6               ; b*16*4")
        a.e("s_lshr_b32 s26, s3, 1")
        a.e("s_lshl_b32 s26, s26, 2")
        a.e("s_add_u32 s25, s25, s26")
        a.e(f"s_add_u32 s25, s25, {XSET + T1F_OFF}")
        a.e("v_mov_b32 v124, 0")
        a.label(LW)
        a.e("s_sub_u32 s29, s29, 1")
        a.e(f"s_cbranch_scc1 {BAIL}")
        a.e("buffer_load_dword v125, v124, s[8:11], s25 offen sc1")
        a.e("s_waitcnt vmcnt(0)")
        a.e("v_cmp_eq_u32 vcc, 0, v125")
        a.e(f"s_cbranch_vccnz {LW}")
        a.label(SKW)

    if not mega:
        kernel_header(a, name)
        a.e("s_cmp_ge_u32 s2, 256")
        a.e(f"s_cbranch_scc1 {END0}")
        a.e("s_and_b32 s3, s2, 7")
        a.e("s_cmp_lg_u32 s3, 0")
        a.e(f"s_cbranch_scc1 {END0}")
    a.e("s_lshr_b32 s3, s2, 3                 ; h = head")
    a.e(f"s_load_dwordx2 s[4:5], s[0:1], {ARG_MEM0}")
    a.e(f"s_load_dwordx2 s[6:7], s[0:1], {ARG_WS}")
    a.e("v_and_b32 v12, 63, v0                ; lane")
    a.e("v_lshrrev_b32 v13, 6, v0")
    a.nop(1)
    a.e("v_readfirstlane_b32 s16, v13")
    a.e("s_waitcnt lgkmcnt(0)")
    srd(a, 8, 6, WS_BYTES)
    srd(a, 12, 4, 8192)
    a.e("s_getreg_b32 s19, hwreg(HW_REG_XCC_ID)")
    a.e("s_and_b32 s19, s19, 0xf")
    a.e("s_add_u32 s19, s19, 1")
    a.e("v_mov_b32 v11, s19")
    a.e("v_mov_b32 v12, 0")
    a.e("s_lshl_b32 s19, s3, 2")
    a.e(f"s_add_u32 s19, s19, {XSET + XCC_OFF}")
    a.e("s_cmp_lg_u32 s16, 0")
    SKIPX = a.newlabel("chain_skipx")
    a.e(f"s_cbranch_scc1 {SKIPX}")
    a.e("buffer_store_dword v11, v12, s[8:11], s19 offen sc1")
    a.label(SKIPX)
    a.e("v_and_b32 v12, 63, v0")
    a.e("s_mov_b32 s20, 0x07060302")
    a.e(f"s_mov_b32 s21, 0x{f32bits(SCALE_LOG2E):08x}")
    a.e(f"s_mov_b32 s29, {pollbudget}")
    a.e("v_lshlrev_b32 v1, 4, v12             ; lane*16")
    a.e("v_lshrrev_b32 v13, 4, v12            ; g")
    a.e("v_and_b32 v14, 15, v12               ; l16")
    a.e("v_lshlrev_b32 v2, 8, v13")
    a.e("v_lshl_add_u32 v2, v14, 4, v2")
    a.e(f"v_add_u32 v2, {L_MF}, v2")
    a.e("s_lshl_b32 s19, s16, 10")
    a.e(f"s_add_u32 s19, s19, {L_XQ}")
    a.e("v_add_u32 v3, s19, v1")
    a.e(f"v_add_u32 v15, {L_XQ}, v1")
    a.e("s_lshl_b32 s19, s16, 15")
    a.e("v_add_u32 v4, s19, v1")
    a.e("v_and_b32 v16, 7, v12                ; i")
    a.e("v_bfe_u32 v17, v12, 3, 1             ; half")
    a.e("v_lshlrev_b32 v5, 8, v13")
    a.e("v_lshl_add_u32 v5, v16, 4, v5")
    a.e("v_lshl_add_u32 v5, v17, 3, v5")
    a.e("s_lshl_b32 s19, s16, 12")
    a.e(f"s_add_u32 s19, s19, {L_MF}")
    a.e("v_add_u32 v5, s19, v5")
    a.e("v_lshlrev_b32 v6, 6, v16")
    a.e("v_lshrrev_b32 v18, 1, v13")
    a.e("v_lshl_add_u32 v6, v18, 9, v6")
    a.e("v_and_b32 v18, 1, v13")
    a.e("v_lshl_add_u32 v6, v18, 5, v6")
    a.e("v_lshl_add_u32 v6, v17, 4, v6")
    a.e("s_lshl_b32 s19, s16, 12")
    a.e(f"s_add_u32 s19, s19, {MEMX}")
    a.e("v_add_u32 v6, s19, v6")
    a.e("v_lshlrev_b32 v18, 10, v16")
    a.e("v_lshl_add_u32 v18, v13, 4, v18")
    a.e("v_lshl_add_u32 v18, v17, 3, v18")
    a.e("s_lshl_b32 s19, s16, 8")
    a.e("v_add_u32 v18, s19, v18")
    a.e("v_lshlrev_b32 v7, 6, v14")
    a.e("v_lshl_add_u32 v7, v13, 4, v7")
    a.e("s_lshl_b32 s19, s16, 17")
    a.e("s_lshl_b32 s22, s3, 9")
    a.e("s_add_u32 s19, s19, s22")
    a.e(f"s_add_u32 s19, s19, {INBOX}")
    a.e("v_add_u32 v7, s19, v7")
    a.e(f"v_mov_b32 v19, {OOB}")
    a.e("v_cmp_gt_u32 vcc, 8, v14")
    a.nop(2)
    a.e("v_cndmask_b32 v7, v19, v7, vcc")
    a.e("v_lshrrev_b32 v8, 3, v12")
    a.e("v_lshlrev_b32 v8, 9, v8")
    a.e("v_and_b32 v9, 7, v12")
    a.e("v_lshl_add_u32 v8, v9, 4, v8")
    a.e("s_lshl_b32 s19, s3, 14")
    a.e("s_lshl_b32 s22, s16, 7")
    a.e("s_add_u32 s19, s19, s22")
    a.e(f"s_add_u32 s19, s19, {INBOX}")
    a.e("v_add_u32 v8, s19, v8")
    for q in range(4):
        a.e(f"s_mov_b32 s{32+q}, {q*4096}")
    a.e("v_lshlrev_b32 v10, 4, v9")
    a.e("s_lshl_b32 s19, s3, 9")
    a.e("s_lshl_b32 s22, s16, 7")
    a.e("s_add_u32 s19, s19, s22")
    a.e(f"s_add_u32 s19, s19, {MEMX}")
    a.e("v_add_u32 v10, s19, v10")
    a.e("v_cmp_gt_u32 vcc, 8, v12")
    a.nop(2)
    a.e("v_cndmask_b32 v10, v19, v10, vcc")
    a.e("v_mov_b32 v11, 0xf149f2ca            ; -1e30")
    a.e("v_cmp_le_u32 vcc, 2, v13")
    a.nop(2)
    a.e("v_cndmask_b32 v16, 0, v11, vcc")
    a.e("v_mov_b32 v17, v16")
    a.e("v_mov_b32 v18, v18")
    a.e("v_mov_b32 v20, 0")
    a.e("v_mov_b32 v21, 0")
    a.e("v_mov_b32 v22, 0")
    a.e("v_mov_b32 v23, 0")
    a.e("v_lshlrev_b32 v11, 4, v0")
    a.e(f"v_add_u32 v11, {L_MF}, v11")
    for k in range(4):
        a.e(f"ds_write_b128 v11, v[20:23] offset:{k*4096}")
    for q in range(4):
        a.e(f"buffer_load_dwordx2 v[{96+2*q}:{97+2*q}], v18, s[12:15], 0 offen offset:{q*64}")
    a.e("v_lshlrev_b32 v11, 4, v0              ; tid*16")
    a.e("s_lshl_b32 s22, s3, 17")
    a.e(f"s_add_u32 s22, s22, {FW + 2*4*MB}")
    for blk in range(4):
        for k in range(8):
            a.e(f"s_add_u32 s19, s22, {(blk*8+k)*4096}")
            a.e(f"buffer_load_dwordx4 v[{32+4*k}:{35+4*k}], v11, s[8:11], s19 offen")
        a.e(f"v_add_u32 v12, {blk*32768}, v11")
        for k in range(8):
            a.e(f"s_waitcnt vmcnt({7-k})")
            a.e(f"ds_write_b128 v12, v[{32+4*k}:{35+4*k}] offset:{k*4096}")
    a.e("s_waitcnt vmcnt(0)")
    for q in range(4):
        a.e(f"ds_write_b64 v5, v[{96+2*q}:{97+2*q}] offset:{q*1024}")
    a.e("s_lshl_b32 s22, s3, 17               ; h*8*16384")
    a.e("s_lshl_b32 s19, s16, 15              ; 2w*16384")
    a.e("s_add_u32 s22, s22, s19")
    for mat in range(3):
        for t2 in range(2):
            base = FW + mat * 4 * MB + t2 * 16384
            for tq in range(4):
                a.e(f"s_add_u32 s19, s22, {base + tq*4096}")
                for tr in range(4):
                    t = tq * 4 + tr
                    ai = ((mat * 2 + t2) * 16 + t) * 4
                    if mat < 2:
                        a.e(f"buffer_load_dwordx4 a[{ai}:{ai+3}], v1, s[8:11], s19 offen offset:{tr*1024}")
    a.e("s_lshl_b32 s22, s3, 17")
    a.e("s_lshl_b32 s19, s16, 15")
    a.e("s_add_u32 s22, s22, s19")
    a.e(f"s_add_u32 s22, s22, {WOF}")
    for k in range(32):
        if k % 4 == 0:
            a.e(f"s_add_u32 s19, s22, {(k//4)*4096}")
        a.e(f"buffer_load_dwordx4 v[{128+4*k}:{131+4*k}], v1, s[8:11], s19 offen offset:{(k%4)*1024}")
    a.e("v_mov_b32 v18, v16")
    a.e("v_mov_b32 v19, v16")
    for r in (22, 23, 26, 27, 30, 31):
        a.e(f"v_mov_b32 v{r}, 0")
    a.e("s_mov_b32 s17, 0                     ; step")
    wait_t1("s17")
    a.e("s_lshl_b32 s23, s3, 13               ; (s*32+h)*8192 for s = 0")
    a.e(f"s_add_u32 s19, s23, {KX_}")
    a.e(f"s_add_u32 s22, s19, 4096")
    for cu in range(8):
        sreg = "s19" if cu < 4 else "s22"
        a.e(f"buffer_load_dwordx4 v[{32+4*cu}:{35+4*cu}], v1, s[8:11], {sreg} offen offset:{(cu%4)*1024}" + SC)
    a.e("s_lshl_b32 s19, s16, 11")
    a.e("s_add_u32 s19, s19, s23")
    a.e(f"s_add_u32 s19, s19, {VX_}")
    for t2 in range(2):
        a.e(f"buffer_load_dwordx4 v[{64+4*t2}:{67+4*t2}], v1, s[8:11], s19 offen offset:{t2*1024}" + SC)
    a.e("v_lshrrev_b32 v11, 0, v1")
    a.e("v_and_b32 v11, 0x1f0, v1             ; (lane&31)*16")
    a.e("v_lshrrev_b32 v11, 2, v11            ; (lane&31)*4")
    a.e(f"v_add_u32 v11, {XSET + XCC_OFF}, v11")
    XP = a.newlabel("chain_xpoll")
    a.label(XP)
    a.e("s_sub_u32 s29, s29, 1")
    a.e(f"s_cbranch_scc1 {BAIL}")
    a.e("buffer_load_dword v12, v11, s[8:11], 0 offen sc1")
    a.e("s_waitcnt vmcnt(0)")
    a.e("v_cmp_eq_u32 vcc, 0, v12")
    a.e(f"s_cbranch_vccnz {XP}")
    a.e("v_readfirstlane_b32 s19, v12")
    a.nop(4)
    a.e("v_cmp_ne_u32 vcc, s19, v12")
    a.e("s_mov_b32 s28, 1")
    XQ_ = a.newlabel("chain_xq")
    a.e(f"s_cbranch_vccz {XQ_}")
    a.e("s_mov_b32 s28, 0")
    a.label(XQ_)
    if force_slow:
        a.e("s_mov_b32 s28, 0")
    a.e("s_waitcnt vmcnt(0) lgkmcnt(0)")
    a.e("s_barrier")

    STEP = a.newlabel("chain_step")
    a.label(STEP)
    stamp("step start")
    a.e("s_add_u32 s18, s17, 1")
    a.e("s_and_b32 s18, s18, 3")
    a.e("v_mov_b32 v11, s18")
    F = [96, 100, 104]
    ACC = [72, 76, 80, 84]
    for k in range(3):
        a.e(f"ds_read_b128 v[{F[k]}:{F[k]+3}], v2 offset:{k*1024}")
    for t in range(16):
        a.e(f"s_waitcnt lgkmcnt({min(2, 15-t)})")
        f = F[t % 3]
        for idx in range(4):
            ai = (idx * 16 + t) * 4
            d = ACC[idx]
            cin = "0" if t == 0 else f"v[{d}:{d+3}]"
            a.e(f"v_mfma_f32_16x16x32_bf16 v[{d}:{d+3}], a[{ai}:{ai+3}], v[{f}:{f+3}], {cin}")
        if t + 3 < 16:
            a.e(f"ds_read_b128 v[{f}:{f+3}], v2 offset:{(t+3)*1024}")
    a.nop(8)
    stamp("P1 done")
    for j in range(2):
        a.e(f"v_cvt_pk_bf16_f32 v{108+2*j}, v{72+4*j}, v{73+4*j}")
        a.e(f"v_cvt_pk_bf16_f32 v{109+2*j}, v{74+4*j}, v{75+4*j}")
    for j in range(2):
        a.e(f"v_cvt_pk_bf16_f32 v{112+2*j}, v{80+4*j}, v{81+4*j}")
        a.e(f"v_cvt_pk_bf16_f32 v{113+2*j}, v{82+4*j}, v{83+4*j}")
    a.e("ds_write_b128 v3, v[108:111]")
    a.e("ds_write_b128 v3, v[112:115] offset:4096")
    a.e("s_lshl_b32 s23, s17, 5")
    a.e("s_add_u32 s23, s23, s3                ; s*32+h")
    a.e("s_lshl_b32 s19, s23, 12")
    a.e("s_lshl_b32 s22, s16, 10")
    a.e("s_add_u32 s19, s19, s22")
    a.e(f"s_add_u32 s19, s19, {KM_}")
    a.e("buffer_store_dwordx4 v[112:115], v1, s[8:11], s19 offen" + SC)
    a.e("s_waitcnt lgkmcnt(0)")
    a.e("s_barrier")
    stamp("qk barrier")
    L = LdsTrack(a)
    QK = [72, 80]
    VACC = [88, 92]
    S0, S1, S2 = 112, 116, 120

    def rd_qk(c):
        b = QK[c % 2]
        L.issue(("k", c), f"ds_read_b128 v[{b}:{b+3}], v15 offset:{4096 + c*1024}")
        L.issue(("q", c), f"ds_read_b128 v[{b+4}:{b+7}], v15 offset:{c*1024}")

    def rd_f(t):
        f = F[t % 3]
        L.issue(("f", t), f"ds_read_b128 v[{f}:{f+3}], v2 offset:{t*1024}")

    vstate = {"t": 0, "go": False}

    WVB = [32, 40, 48]

    def rd_wv(t):
        b = WVB[t % 3]
        L.issue(("wv0", t), f"ds_read_b128 v[{b}:{b+3}], v4 offset:{t*1024}")
        L.issue(("wv1", t), f"ds_read_b128 v[{b+4}:{b+7}], v4 offset:{16384 + t*1024}")

    def vstep():
        t = vstate["t"]
        if t >= 16 or not vstate["go"]:
            return
        L.wait(("f", t))
        L.wait(("wv1", t))
        f = F[t % 3]
        wb = WVB[t % 3]
        for t2 in range(2):
            d = VACC[t2]
            cin = "0" if t == 0 else f"v[{d}:{d+3}]"
            a.e(f"v_mfma_f32_16x16x32_bf16 v[{d}:{d+3}], v[{f}:{f+3}], v[{wb+4*t2}:{wb+4*t2+3}], {cin}")
        if t + 3 < 16:
            rd_f(t + 3)
            rd_wv(t + 3)
        vstate["t"] = t + 1

    rd_qk(0); rd_f(0); rd_qk(1); rd_f(1); rd_f(2)
    for c in range(4):
        b = QK[c % 2]
        L.wait(("q", c))
        c0 = "v[16:19]" if c == 0 else f"v[{S0}:{S0+3}]"
        c1 = "0" if c == 0 else f"v[{S1}:{S1+3}]"
        c2 = "0" if c == 0 else f"v[{S2}:{S2+3}]"
        a.e(f"v_mfma_f32_16x16x32_bf16 v[{S0}:{S0+3}], v[{b}:{b+3}], v[{b+4}:{b+7}], {c0}")
        kx0 = 32 + (c * 2 + 0) * 4
        kx1 = 32 + (c * 2 + 1) * 4
        a.e(f"v_mfma_f32_16x16x32_bf16 v[{S1}:{S1+3}], v[{kx0}:{kx0+3}], v[{b+4}:{b+7}], {c1}")
        a.e(f"v_mfma_f32_16x16x32_bf16 v[{S2}:{S2+3}], v[{kx1}:{kx1+3}], v[{b+4}:{b+7}], {c2}")
        if c + 2 < 4:
            rd_qk(c + 2)
    rd_wv(0); rd_wv(1); rd_wv(2)
    vstate["go"] = True
    a.nop(4)
    crit = []
    def cg(*ins):
        crit.append(list(ins))
    cg("v_max3_f32 v124, v112, v113, v114", "v_max3_f32 v125, v115, v116, v117", "v_max3_f32 v126, v118, v119, v120",
       "v_max3_f32 v127, v121, v122, v123", "v_max3_f32 v124, v124, v125, v126", "v_max_f32 v124, v124, v127")
    for swap in ("v_permlane16_swap_b32", "v_permlane32_swap_b32"):
        cg("v_mov_b32 v125, v124", "s_nop 1", f"{swap} v124, v125", "s_nop 0", "v_max_f32 v124, v124, v125")
    cg("v_mul_f32 v124, s21, v124")
    for i in range(0, 12, 4):
        cg(*[f"v_fma_f32 v{112+i+j}, v{112+i+j}, s21, -v124" for j in range(4)])
    for i in range(0, 12, 3):
        cg(*[f"v_exp_f32 v{112+i+j}, v{112+i+j}" for j in range(3)])
    cg("s_nop 0", "v_add_f32 v125, v112, v113", "v_add_f32 v126, v114, v115", "v_add_f32 v127, v116, v117", "v_add_f32 v108, v118, v119",
       "v_add_f32 v109, v120, v121", "v_add_f32 v110, v122, v123")
    cg("v_add_f32 v125, v125, v126", "v_add_f32 v127, v127, v108", "v_add_f32 v109, v109, v110", "v_add_f32 v125, v125, v127", "v_add_f32 v125, v125, v109")
    for swap in ("v_permlane16_swap_b32", "v_permlane32_swap_b32"):
        cg("v_mov_b32 v126, v125", "s_nop 1", f"{swap} v125, v126", "s_nop 0", "v_add_f32 v125, v125, v126")
    cg("v_rcp_f32 v125, v125", "s_nop 0")
    for i in range(0, 12, 4):
        cg(*[f"v_mul_f32 v{112+i+j}, v125, v{112+i+j}" for j in range(4)])
    cg("v_cvt_pk_bf16_f32 v28, v112, v113", "v_cvt_pk_bf16_f32 v29, v114, v115", "v_cvt_pk_bf16_f32 v108, v116, v117",
       "v_cvt_pk_bf16_f32 v109, v118, v119", "v_cvt_pk_bf16_f32 v110, v120, v121", "v_cvt_pk_bf16_f32 v111, v122, v123")
    for grp in crit:
        for ins in grp:
            a.e(ins)
        vstep()
    while vstate["t"] < 16:
        vstep()
    a.e("s_add_u32 s23, s17, 1")
    a.e("s_lshl_b32 s23, s23, 5")
    a.e("s_add_u32 s23, s23, s3")
    a.e("s_lshl_b32 s23, s23, 13              ; ((s+1)*32+h)*8192")
    a.e(f"s_add_u32 s19, s23, {KX_}")
    a.e(f"s_add_u32 s22, s19, 4096")
    a.e("s_cmp_eq_u32 s17, 63")
    SKP = a.newlabel("chain_nopf")
    a.e(f"s_cbranch_scc1 {SKP}")
    a.e("s_add_u32 s24, s17, 1")
    wait_t1("s24")
    for cu in range(8):
        sreg = "s19" if cu < 4 else "s22"
        a.e(f"buffer_load_dwordx4 v[{32+4*cu}:{35+4*cu}], v1, s[8:11], {sreg} offen offset:{(cu%4)*1024}" + SC)
    a.label(SKP)
    a.nop(8)
    stamp("softmax done")
    a.e("v_cvt_pk_bf16_f32 v20, v88, v89")
    a.e("v_cvt_pk_bf16_f32 v21, v90, v91")
    a.e("v_cvt_pk_bf16_f32 v24, v92, v93")
    a.e("v_cvt_pk_bf16_f32 v25, v94, v95")
    a.e("s_lshl_b32 s22, s17, 5")
    a.e("s_add_u32 s22, s22, s3")
    a.e("s_lshl_b32 s19, s22, 13")
    a.e("s_lshl_b32 s22, s16, 11")
    a.e("s_add_u32 s19, s19, s22")
    a.e(f"s_add_u32 s19, s19, {VM_}")
    a.e("buffer_store_dwordx4 v[20:23], v1, s[8:11], s19 offen" + SC)
    a.e("buffer_store_dwordx4 v[24:27], v1, s[8:11], s19 offen offset:1024" + SC)
    a.e("s_cmp_eq_u32 s17, 63")
    a.e(f"s_cbranch_scc1 {END}")
    a.e("v_mfma_f32_16x16x32_bf16 v[72:75], v[64:67], v[108:111], 0")
    a.e("v_mfma_f32_16x16x32_bf16 v[76:79], v[68:71], v[108:111], 0")
    a.e("v_mfma_f32_16x16x32_bf16 v[72:75], v[20:23], v[28:31], v[72:75]")
    a.e("v_mfma_f32_16x16x32_bf16 v[76:79], v[24:27], v[28:31], v[76:79]")
    a.e("s_lshl_b32 s19, s16, 11")
    a.e("s_add_u32 s19, s19, s23")
    a.e(f"s_add_u32 s19, s19, {VX_}")
    for t2 in range(2):
        a.e(f"buffer_load_dwordx4 v[{64+4*t2}:{67+4*t2}], v1, s[8:11], s19 offen offset:{t2*1024}" + SC)
    a.nop(6)
    a.e("v_cvt_pk_bf16_f32 v92, v72, v73")
    a.e("v_cvt_pk_bf16_f32 v93, v74, v75")
    a.e("v_cvt_pk_bf16_f32 v94, v76, v77")
    a.e("v_cvt_pk_bf16_f32 v95, v78, v79")
    a.e("ds_write_b128 v3, v[92:95] offset:8192")
    a.e("s_waitcnt lgkmcnt(0)")
    a.e("s_barrier")
    stamp("o barrier")
    OFR = [96, 100, 104, 108]
    for c in range(4):
        a.e(f"ds_read_b128 v[{OFR[c]}:{OFR[c]+3}], v15 offset:{8192 + c*1024}")
    def dual_store(ins):
        LP = a.newlabel("chain_plain"); LD = a.newlabel("chain_sdone")
        a.e("s_cmp_eq_u32 s28, 1")
        a.e(f"s_cbranch_scc1 {LP}")
        a.e(ins + " sc1")
        a.e(f"s_branch {LD}")
        a.label(LP)
        a.e(ins)
        a.label(LD)

    def emit_store(T):
        acc = 112 + 4 * (T % 4)
        for r in range(4):
            a.e(f"v_and_or_b32 v{acc+r}, v{acc+r}, -4, v11")
        a.e(f"s_mov_b32 s19, {T*16384}")
        dual_store(f"buffer_store_dwordx4 v[{acc}:{acc+3}], v7, s[8:11], s19 offen")

    a.e("s_waitcnt lgkmcnt(0)")
    stamp("Wo begin")
    for G in range(2):
        if G == 1:
            stamp("Wo mid")
        for c in range(4):
            for TT in range(4):
                T = G * 4 + TT
                acc = 112 + 4 * TT
                wa = 128 + (T * 4 + c) * 4
                cin = "0" if c == 0 else f"v[{acc}:{acc+3}]"
                a.e(f"v_mfma_f32_16x16x32_bf16 v[{acc}:{acc+3}], v[{wa}:{wa+3}], v[{OFR[c]}:{OFR[c]+3}], {cin}")
        a.nop(8)
        for TT in range(4):
            if G == 1 and TT == 3:
                break
            emit_store(G * 4 + TT)
        a.nop(2)
    emit_store(7)
    stamp("Wo stage done")

    P1 = a.newlabel("chain_poll1")
    if instr:
        a.e("s_mov_b32 s60, 0")
        a.e("s_mov_b32 s61, 0")
    a.label(P1)
    if instr:
        a.e("s_add_u32 s60, s60, 1")
    a.e("s_sub_u32 s29, s29, 1")
    a.e(f"s_cbranch_scc1 {BAIL}")
    for q in range(4):
        a.e(f"buffer_load_dwordx4 v[{72+4*q}:{75+4*q}], v8, s[8:11], s{32+q} offen sc1")
    a.e("s_waitcnt vmcnt(0)")
    check_tags(a, 72, 16, 11, 124, 125, 126)
    a.e(f"s_cbranch_vccnz {P1}")
    stamp("poll1 ok")
    if instr:
        for q in range(4):
            a.e(f"buffer_load_dwordx4 v[{96+4*q}:{99+4*q}], v8, s[8:11], s{32+q} offen sc1")
        a.e("s_waitcnt vmcnt(0)")
        stamp("poll1 repeat")
    for r in range(4):
        a.e(f"v_add_f32 v{88+r}, v{72+r}, v{76+r}")
        a.e(f"v_add_f32 v{92+r}, v{80+r}, v{84+r}")
    for r in range(4):
        a.e(f"v_add_f32 v{88+r}, v{88+r}, v{92+r}")
    a.nop(2)
    for r in range(4):
        a.e(f"v_add_f32_dpp v{88+r}, v{88+r}, v{88+r} row_ror:8 row_mask:0xf bank_mask:0xf")
    for swap in ("v_permlane16_swap_b32", "v_permlane32_swap_b32"):
        for r in range(4):
            a.e(f"v_mov_b32 v{92+r}, v{88+r}")
        a.nop(1)
        for r in range(4):
            a.e(f"{swap} v{88+r}, v{92+r}")
        a.nop(1)
        for r in range(4):
            a.e(f"v_add_f32 v{88+r}, v{88+r}, v{92+r}")
    a.e("v_cvt_pk_bf16_f32 v92, v88, v89")
    a.e("v_cvt_pk_bf16_f32 v93, v90, v91")
    a.e("s_mov_b32 s19, 0xffff0000")
    a.e("v_lshl_or_b32 v112, v92, 16, v11")
    a.e("v_and_or_b32 v113, v92, s19, v11")
    a.e("v_lshl_or_b32 v114, v93, 16, v11")
    a.e("v_and_or_b32 v115, v93, s19, v11")
    dual_store("buffer_store_dwordx4 v[112:115], v10, s[8:11], 0 offen")
    PM = a.newlabel("chain_pollm")
    if sleepm:
        a.e(f"s_sleep {sleepm}")
    a.label(PM)
    if instr:
        a.e("s_add_u32 s61, s61, 1")
    a.e("s_sub_u32 s29, s29, 1")
    a.e(f"s_cbranch_scc1 {BAIL}")
    for q in range(4):
        a.e(f"buffer_load_dwordx4 v[{72+4*q}:{75+4*q}], v6, s[8:11], 0 offen offset:{q*1024} sc1")
    a.e("s_waitcnt vmcnt(0)")
    check_tags(a, 72, 16, 11, 124, 125, 126)
    a.e(f"s_cbranch_vccnz {PM}")
    stamp("pollM ok")
    if instr:
        for q in range(4):
            a.e(f"buffer_load_dwordx4 v[{96+4*q}:{99+4*q}], v6, s[8:11], 0 offen offset:{q*1024} sc1")
        a.e("s_waitcnt vmcnt(0)")
        stamp("pollM repeat")
    for q in range(4):
        a.e(f"v_perm_b32 v{88+2*q}, v{73+4*q}, v{72+4*q}, s20")
        a.e(f"v_perm_b32 v{89+2*q}, v{75+4*q}, v{74+4*q}, s20")
    for q in range(4):
        a.e(f"ds_write_b64 v5, v[{88+2*q}:{89+2*q}] offset:{q*1024}")
    a.e("s_waitcnt lgkmcnt(0)")
    a.e("s_barrier")
    if instr:
        a.e("s_cmp_eq_u32 s17, 20")
        a.e(f"s_cselect_b32 s{40+nst[0]}, s60, s{40+nst[0]}")
        a.e(f"s_cselect_b32 s{41+nst[0]}, s61, s{41+nst[0]}")
        nst[0] += 2
    a.e("s_add_u32 s17, s17, 1")
    a.e(f"s_branch {STEP}")
    a.label(BAIL)
    a.label(END)
    if instr:
        SK = a.newlabel("chain_skipdump")
        a.e("s_lshl_b32 s19, s3, 2")
        a.e("s_add_u32 s19, s19, s16")
        a.e("s_lshl_b32 s19, s19, 7")
        a.e(f"s_add_u32 s19, s19, {WS_USED}")
        for i in range(nst[0]):
            a.e(f"v_mov_b32 v{32+i}, s{40+i}")
        a.e("v_mov_b32 v31, 0")
        for i in range(nst[0]):
            a.e(f"buffer_store_dword v{32+i}, v31, s[8:11], s19 offen offset:{4*i}")
    a.label(END0)
    a.e("s_endpgm")
    if not mega:
        a.lines.append(kernel_desc(name, 512, 256))
```

```python
import math

KNAME = "interleave_layers__grouped_kv_mqa__memory_aug_recurrent_mem_tr__prompt"

ARG_AX, ARG_AWQ, ARG_AWK, ARG_AWV, ARG_AWO = 0, 8, 16, 24, 32
ARG_BX, ARG_MEM0, ARG_BWQ, ARG_BWK, ARG_BWV, ARG_BWO, ARG_SEG = 40, 48, 56, 64, 72, 80, 88
ARG_OUT, ARG_DBG, ARG_WS = 96, 104, 112
WS_BYTES = 268435456

MB = 1 << 20
FW   = 0
WOF  = 12 * MB
FA   = 16 * MB
FAO  = FA + 34 * 16 * 1024
XCH  = 18 * MB
XCH_SET = 1 * MB
INBOX_OFF = 0
MEMX_OFF = 512 * 1024
X1   = 20 * MB
X2   = 22 * MB
X3   = 24 * MB
XN   = 26 * MB
QA   = 28 * MB
OA   = 30 * MB
KFA  = 32 * MB
VFA  = 32 * MB + 64 * 1024
KX   = 48 * MB
VX   = 64 * MB
QX   = 80 * MB
KM   = 96 * MB
VM   = 104 * MB
OF   = 120 * MB
LAYER_OFF = 88 * MB
PART = 224 * MB
T1F_OFF = 528 * 1024 + 256
CHF_OFF = 544 * 1024
CNT_OFF = 528 * 1024 + 1536
WS_USED = 240 * MB


class Asm:
    def __init__(self):
        self.lines = []
        self.uid = 0

    def e(self, s):
        self.lines.append("    " + s)

    def c(self, s):
        self.lines.append("    ; " + s)

    def label(self, l):
        self.lines.append(l + ":")

    def newlabel(self, base):
        self.uid += 1
        return f"L_{base}_{self.uid}"

    def nop(self, n):
        while n > 0:
            k = min(n, 16)
            self.e(f"s_nop {k-1}")
            n -= k

    def text(self):
        return "\n".join(self.lines) + "\n"


def f32bits(x):
    import struct
    return struct.unpack("<I", struct.pack("<f", x))[0]


def kernel_header(a, name):
    a.lines.append(".p2align 8")
    a.lines.append(f".globl {name}")
    a.lines.append(f".type {name},@function")
    a.label(name)


def kernel_desc(name, vgpr, accum, sgpr=102):
    return f""".section .rodata,"a"
.p2align 6
.amdhsa_kernel {name}
  .amdhsa_next_free_vgpr {vgpr}
  .amdhsa_next_free_sgpr {sgpr}
  .amdhsa_accum_offset {accum}
  .amdhsa_group_segment_fixed_size 0
  .amdhsa_kernarg_size 120
  .amdhsa_user_sgpr_count 2
  .amdhsa_user_sgpr_kernarg_segment_ptr 1
  .amdhsa_system_sgpr_workgroup_id_x 1
.end_amdhsa_kernel
.text
"""


def srd(a, d, base_lo, nbytes):
    a.e(f"s_mov_b32 s{d}, s{base_lo}")
    a.e(f"s_and_b32 s{d+1}, s{base_lo+1}, 0xffff")
    a.e(f"s_mov_b32 s{d+2}, {nbytes}")
    a.e(f"s_mov_b32 s{d+3}, 0x00020000")
```

```python
from common import *
import chain, blayer

LDS = max(chain.LDS_BYTES, blayer.KB1_LDS)

def gen_mega(a, name, layer):
    kernel_header(a, name)
    EXIT = a.newlabel("mega_exit"); WORK = a.newlabel("mega_work")
    a.e("s_cmp_ge_u32 s2, 256")
    a.e(f"s_cbranch_scc1 {EXIT}")
    a.e("s_and_b32 s3, s2, 7")
    a.e("s_cmp_lg_u32 s3, 0")
    a.e(f"s_cbranch_scc1 {WORK}")
    chain.gen_chain(a, name, layer, mega=True)
    a.label(WORK)
    a.e("s_lshr_b32 s3, s2, 3")
    a.e("s_sub_u32 s27, s2, s3")
    a.e("s_sub_u32 s27, s27, 1                ; j")
    a.e("s_mov_b32 s36, s27")
    TL = a.newlabel("mega_tloop")
    a.label(TL)
    blayer.gen_kb1(a, name, layer, mega=True)
    DONE = a.newlabel("mega_wdone")
    a.e("s_cmp_ge_u32 s36, 32")
    a.e(f"s_cbranch_scc1 {DONE}")
    a.e("s_cmp_ge_u32 s27, 224")
    a.e(f"s_cbranch_scc1 {DONE}")
    a.e("s_add_u32 s27, s36, 224")
    a.e("s_barrier")
    a.e(f"s_branch {TL}")
    a.label(DONE)
    a.label(EXIT)
    a.e("s_endpgm")
    a.lines.append(kernel_desc(name, 512, 256))
```

```python
import sys, os
sys.path.insert(0, os.path.dirname(__file__))
from common import *
import chain, prep, alayer, blayer, mega

HEADER = open('cdna_kernels/%s.s.ref' % KNAME).read().split('; Override launch geometry')[0]

def build(launches, bodies):
    out = [HEADER]
    for (k, g, b, lds) in launches:
        out.append(f"; @launch kernel={k} grid=({g[0]},{g[1]},{g[2]}) block=({b[0]},{b[1]},{b[2]}) lds={lds}\n")
    out.append('.amdgcn_target "amdgcn-amd-amdhsa--gfx950"\n.text\n')
    out.append(bodies)
    return "".join(out)

def all_kernels(opts):
    a = Asm()
    sp = 1 if "--spread" in opts else 8
    pl = "--plain" in opts
    slp = [int(o.split('=')[1]) for o in opts if o.startswith('--sleepm=')]
    slp = slp[0] if slp else 0
    prep.gen_prep(a, "prep_kernel")
    alayer.gen_ka1(a, "ka1_0_kernel", 0)
    alayer.gen_ka1(a, "ka1_1_kernel", 1)
    alayer.gen_ka2(a, "ka2_kernel")
    alayer.gen_ka3(a, "ka3_0_kernel", 0)
    alayer.gen_ka3(a, "ka3_1_kernel", 1)
    blayer.gen_kb3(a, "kb3_0_kernel", 0)
    blayer.gen_kb3(a, "kb3_1_kernel", 1)
    mega.gen_mega(a, "mega0_kernel", 0)
    mega.gen_mega(a, "mega1_kernel", 1)
    blayer.gen_kb4(a, "kb4_0_kernel", 0)
    blayer.gen_kb4(a, "kb4_1_kernel", 1)
    return a

def launch_list():
    L = [("prep_kernel", (prep.GEND,1,1), (256,1,1), 0)]
    for l in range(2):
        L += [(f"ka1_{l}_kernel", (128,1,1), (256,1,1), 16640),
              ("ka2_kernel", (256,1,1), (512,1,1), alayer.KA2_LDS),
              (f"ka3_{l}_kernel", (128,1,1), (256,1,1), 16640),
              (f"mega{l}_kernel", (256,1,1), (256,1,1), mega.LDS),
              (f"kb3_{l}_kernel", (512,1,1), (256,1,1), 0),
              (f"kb4_{l}_kernel", (256,1,1), (256,1,1), 0)]
    return L

if __name__ == "__main__":
    opts = [x for x in sys.argv[1:] if x.startswith('--')]
    args = [x for x in sys.argv[1:] if not x.startswith('--')]
    a = all_kernels(opts)
    s = build(launch_list(), a.text())
    dst = args[0] if args else 'test.s'
    open(dst, 'w').write(s)
    print("wrote", dst, len(s), "bytes")
```
